```python
import torch

def _softmax(x, axis=-1):
    return torch.softmax(x, dim=axis)
def _gelu(x):
    return torch.nn.functional.gelu(x, approximate="tanh")
def _silu(x):
    return torch.nn.functional.silu(x)
def _sigmoid(x):
    return torch.sigmoid(x)
def _layernorm(x, axis=-1, eps=1e-5):
    m = x.mean(dim=axis, keepdim=True)
    v = x.var(dim=axis, keepdim=True, unbiased=False)
    return (x - m) / torch.sqrt(v + eps)
def _scatter_add(tgt, idx, src, axis=0):
    return tgt.clone().index_add_(axis, idx, src)
def _segment_sum(src, seg, n):
    out = torch.zeros((n,) + src.shape[1:], dtype=src.dtype)
    return out.index_add_(0, seg, src)
def _pad(x, pw):
    flat = tuple(v for pair in reversed(pw) for v in pair)
    return torch.nn.functional.pad(x, flat)

kernel_name = 'parallel_sum__mha_block_cached__geglu_ffn__decode'

def setup_inputs():

    _w = (lambda a: (lambda t: t.to(torch.bfloat16) if t.is_floating_point() else t)(torch.as_tensor(a)))
    def _A_setup():
        B, Sq, D = 2, 1, 640
        H, Sk, Dh = 32, 4096, 192
        return {
            "x": _w((lambda *s: torch.randn(*s, dtype=torch.bfloat16) * 0.05)(B, Sq, D)),
            "k_cache": _w((lambda *s: torch.randn(*s, dtype=torch.bfloat16) * 3.2)(B, H, Sk, Dh)),
            "v_cache": _w((lambda *s: torch.randn(*s, dtype=torch.bfloat16) * 1.6)(B, H, Sk, Dh)),
            "wq": _w((lambda *s: torch.randn(*s, dtype=torch.bfloat16) * 3.2)(D, H * Dh) * (D ** -0.5)),
            "wo": _w((lambda *s: torch.randn(*s, dtype=torch.bfloat16) * 1.6)(H * Dh, D) * ((H * Dh) ** -0.5)),
        }
    _A_in = _A_setup()

    def _B_setup():
        B, S, D, F = 2, 1, 640, 1536
        return {
            "x": _w((lambda *s: torch.randn(*s, dtype=torch.bfloat16) * 0.05)(B, S, D)),
            "w_gate": _w((lambda *s: torch.randn(*s, dtype=torch.bfloat16) * 0.05)(D, F)),
            "w_up": _w((lambda *s: torch.randn(*s, dtype=torch.bfloat16) * 0.05)(D, F)),
            "w_down": _w((lambda *s: torch.randn(*s, dtype=torch.bfloat16) * 0.05)(F, D)),
        }
    _B_in = _B_setup()

    return {
        "A_x": _A_in["x"],
        "A_k_cache": _A_in["k_cache"],
        "A_v_cache": _A_in["v_cache"],
        "A_wq": _A_in["wq"],
        "A_wo": _A_in["wo"],
        "B_x": _B_in["x"],
        "B_w_gate": _B_in["w_gate"],
        "B_w_up": _B_in["w_up"],
        "B_w_down": _B_in["w_down"],
    }

def reference(A_x, A_k_cache, A_v_cache, A_wq, A_wo, B_x, B_w_gate, B_w_up, B_w_down):
    def _A_ref(x, k_cache, v_cache, wq, wo):
        B, Sq, D = x.shape
        H, Dh = 32, 192
        q = (lambda x, *d: x.permute(*d))((x @ wq).reshape(B, Sq, H, Dh), 0, 2, 1, 3)
        scores = torch.einsum("bhqd,bhkd->bhqk", q, k_cache) * (Dh ** -0.5)
        p = _softmax(scores, axis=-1)
        o = torch.einsum("bhqk,bhkd->bhqd", p, v_cache)
        return (lambda x, *d: x.permute(*d))(o, 0, 2, 1, 3).reshape(B, Sq, H * Dh) @ wo

    def _B_ref(x, w_gate, w_up, w_down):
        return (_gelu(x @ w_gate) * (x @ w_up)) @ w_down

    x = A_x
    xn = _layernorm(x, axis=-1)
    return x + _A_ref(xn, A_k_cache, A_v_cache, A_wq, A_wo) + _B_ref(xn, B_w_gate, B_w_up, B_w_down)
```

```python
import re

TRANS = ("v_exp_f32", "v_log_f32", "v_rcp_f32", "v_rsq_f32", "v_sqrt_f32", "v_sin_f32", "v_cos_f32")


def V(i, n=1):
    return f"v{i}" if n == 1 else f"v[{i}:{i + n - 1}]"


def S(i, n=1):
    return f"s{i}" if n == 1 else f"s[{i}:{i + n - 1}]"


_reg_re = re.compile(r"^([vs])(\d+)$")
_rng_re = re.compile(r"^([vs])\[(\d+):(\d+)\]$")


def regs_of(op):
    op = op.strip()
    if op.startswith("-"):
        op = op[1:]
    if op.startswith("|") and op.endswith("|"):
        op = op[1:-1]
    m = _reg_re.match(op)
    if m:
        return {(m.group(1), int(m.group(2)))}
    m = _rng_re.match(op)
    if m:
        return {(m.group(1), k) for k in range(int(m.group(2)), int(m.group(3)) + 1)}
    if op in ("vcc", "vcc_lo", "vcc_hi"):
        return {("vcc", 0)}
    if op in ("exec", "exec_lo", "exec_hi"):
        return {("exec", 0)}
    if op == "m0":
        return {("m0", 0)}
    return set()


class Ins:
    def __init__(self, text):
        self.text = text
        t = text.split(";")[0].strip()
        self.is_label = t.endswith(":")
        self.is_dir = t.startswith(".") and not self.is_label
        self.mn = ""
        self.ops = []
        self.mods = ""
        self.defs = set()
        self.uses = set()
        self.cls = "none"
        if not t or self.is_label or self.is_dir:
            return
        parts = t.split(None, 1)
        self.mn = parts[0]
        rest = parts[1] if len(parts) > 1 else ""
        ops, depth, cur = [], 0, ""
        for ch in rest:
            if ch in "[(":
                depth += 1
            if ch in "])":
                depth -= 1
            if ch == "," and depth == 0:
                ops.append(cur.strip())
                cur = ""
            else:
                cur += ch
        if cur.strip():
            ops.append(cur.strip())
        if ops:
            last = ops[-1].split(None, 1)
            if len(last) > 1:
                ops[-1] = last[0]
                self.mods = last[1]
        self.ops = ops
        self.classify()

    def classify(self):
        mn, ops = self.mn, self.ops
        R = [regs_of(o) for o in ops]
        allsrc = lambda k: set().union(*R[k:]) if len(R) > k else set()
        self.dpp = any(x in self.mods for x in ("quad_perm", "row_", "wave_")) or mn.endswith("_dpp")
        self.sdwa = mn.endswith("_sdwa")
        if mn.startswith("v_mfma"):
            self.cls = "mfma"
            self.defs = R[0]
            self.srcA, self.srcB, self.srcC = R[1], R[2], R[3]
            self.uses = R[1] | R[2] | R[3]
        elif mn.startswith("v_dot"):
            self.cls = "dot"
            self.defs = R[0]
            self.uses = allsrc(1)
            self.srcAB = R[1] | R[2]
            if mn.startswith("v_dot2c"):
                self.uses |= R[0]
                self.srcAB = R[1] | R[2]
        elif mn.startswith("v_permlane") and "swap" in mn:
            self.cls = "permlane"
            self.defs = R[0] | R[1]
            self.uses = R[0] | R[1]
        elif mn.startswith("v_readfirstlane") or mn.startswith("v_readlane"):
            self.cls = "readlane"
            self.defs = R[0]
            self.uses = allsrc(1)
        elif mn.startswith("v_cmpx"):
            self.cls = "valu"
            self.defs = R[0] | {("exec", 0)}
            self.uses = allsrc(1)
        elif mn.startswith("v_cmp"):
            self.cls = "valu"
            self.defs = R[0]
            self.uses = allsrc(1)
        elif mn.startswith("v_"):
            self.cls = "valu"
            self.defs = R[0] if R else set()
            self.uses = allsrc(1)
            base = mn.replace("_e32", "").replace("_e64", "").replace("_dpp", "").replace("_sdwa", "")
            if base in ("v_fmac_f32", "v_mac_f32", "v_pk_fmac_f16"):
                self.uses |= R[0]
            if base == "v_cndmask_b32" and len(ops) == 3:
                self.uses |= {("vcc", 0)}
            if base in ("v_add_co_u32", "v_sub_co_u32", "v_addc_co_u32"):
                self.defs = R[0] | R[1]
                self.uses = allsrc(2)
            if self.dpp and ("bank_mask:0xf" not in self.mods or "row_mask:0xf" not in self.mods):
                self.uses |= R[0]
            if base in TRANS:
                self.trans = True
        elif mn.startswith("buffer_load"):
            self.cls = "vmem"
            if "lds" in self.mods.split():
                self.uses = allsrc(0)
            else:
                self.defs = R[0]
                self.uses = allsrc(1)
        elif mn.startswith("buffer_store") or mn.startswith("buffer_atomic"):
            self.cls = "vmem"
            self.store_data = R[0]
            self.uses = allsrc(0)
            self.wide = mn.endswith("x3") or mn.endswith("x4")
        elif mn.startswith("ds_read") or mn.startswith("ds_bpermute") or mn.startswith("ds_swizzle"):
            self.cls = "ds"
            self.defs = R[0]
            self.uses = allsrc(1)
        elif mn.startswith("ds_"):
            self.cls = "ds"
            self.uses = allsrc(0)
        elif mn.startswith("s_"):
            self.cls = "salu"
            if mn in ("s_nop", "s_waitcnt", "s_barrier", "s_endpgm", "s_branch", "s_sleep", "s_setprio") or mn.startswith("s_cbranch"):
                pass
            elif mn.startswith("s_cmp") or mn.startswith("s_bitcmp"):
                self.uses = allsrc(0)
            else:
                self.defs = R[0] if R else set()
                self.uses = allsrc(1)

    def states(self):
        if self.mn == "s_nop":
            return int(self.ops[0], 0) + 1
        if self.cls == "none":
            return 0
        return 1


def is_valu(i):
    return i.cls in ("valu", "dot", "permlane", "readlane")


def vonly(s):
    return {r for r in s if r[0] == "v"}


def sonly(s):
    return {r for r in s if r[0] in ("s", "vcc")}


def need(p, c):
    n = 0
    pv = vonly(p.defs)
    if is_valu(p):
        ps = sonly(p.defs)
        if pv:
            if p.cls == "dot":
                if pv & (c.uses | c.defs):
                    if c.cls == "dot" and c.mn == p.mn and not (pv & c.srcAB):
                        pass
                    else:
                        n = max(n, 3)
            if is_valu(c) and getattr(c, "dpp", False) and (pv & vonly(c.uses)):
                n = max(n, 2)
            if c.cls == "permlane" and (pv & c.uses):
                n = max(n, 2)
            if c.cls == "readlane" and (pv & c.uses):
                n = max(n, 1)
            if c.cls == "mfma" and (pv & c.uses):
                n = max(n, 2)
            if getattr(p, "trans", False) and is_valu(c) and not getattr(c, "trans", False) and (pv & c.uses):
                n = max(n, 1)
            if getattr(p, "sdwa", False) and is_valu(c) and (pv & (c.uses | c.defs)):
                n = max(n, 1)
        if ps:
            if c.cls == "vmem" and (ps & c.uses):
                n = max(n, 5)
            if c.cls == "readlane" and len(c.ops) > 2 and (ps & regs_of(c.ops[2])):
                n = max(n, 4)
            if is_valu(c) and (ps & c.uses):
                n = max(n, 2)
        if ("exec", 0) in p.defs:
            if is_valu(c) and getattr(c, "dpp", False):
                n = max(n, 5)
            if c.cls in ("permlane", "readlane", "mfma"):
                n = max(n, 4)
            if is_valu(c) and ("exec", 0) in c.uses:
                n = max(n, 2)
    if p.cls == "mfma":
        passes = 8 if "32x32" in p.mn else 4
        big = {4: 8, 8: 12}[passes]
        if c.cls == "mfma":
            if pv & (c.srcA | c.srcB):
                n = max(n, big)
            if pv & c.srcC:
                if c.srcC == p.defs:
                    pass
                else:
                    n = max(n, {4: 6, 8: 10}[passes])
            elif pv & c.defs:
                n = max(n, big)
        elif pv & (c.uses | c.defs):
            n = max(n, big)
        if is_valu(c) and (vonly(p.srcC) & c.defs):
            n = max(n, {4: 3, 8: 7}[passes])
    if p.cls == "vmem" and getattr(p, "wide", False):
        if p.store_data & c.defs:
            n = max(n, 2 if is_valu(c) else 1)
    return n


class Asm:
    def __init__(self):
        self.lines = []

    def __call__(self, text):
        for l in text.strip("\n").split("\n"):
            l = l.strip()
            if l:
                self.lines.append(l)

    def label(self, name):
        self.lines.append(name + ":")

    def finish(self, window=24):
        ins = [Ins(l) for l in self.lines]
        out = []
        nfix = 0

        def fix(history, c):
            worst = 0
            dist = 0
            for p in reversed(history):
                if dist >= window:
                    break
                if p.cls != "none":
                    r = need(p, c) - dist
                    worst = max(worst, r)
                dist += p.states()
            return worst

        for c in ins:
            if c.cls != "none":
                w = fix(out, c)
                if w > 0:
                    out.append(Ins(f"s_nop {w - 1}"))
                    nfix += 1
            out.append(c)
        labels = {}
        for k, i in enumerate(out):
            if i.is_label:
                labels[i.text.split(";")[0].strip()[:-1]] = k
        k = 0
        problems = []
        for k, i in enumerate(out):
            if i.mn == "s_branch" or i.mn.startswith("s_cbranch"):
                tgt = i.ops[0]
                if tgt not in labels:
                    problems.append(f"unknown label {tgt}")
                    continue
                hist = out[max(0, k - 40):k + 1]
                sim = list(hist)
                dist = 0
                for c in out[labels[tgt]:labels[tgt] + 40]:
                    if c.cls != "none":
                        w = fix(sim, c)
                        if w > 0:
                            problems.append(f"branch to {tgt}: hazard {w} before '{c.text}'")
                    sim.append(c)
                    dist += c.states()
                    if dist > window or c.mn in ("s_branch", "s_endpgm"):
                        break
        self.problems = problems
        self.nfix = nfix
        return [i.text for i in out]


class VmQ:
    def __init__(self):
        self.q = []

    def issue(self, tag, n=1):
        self.q += [tag] * n

    def count_after(self, tag):
        idx = max(k for k, t in enumerate(self.q) if t == tag)
        return len(self.q) - 1 - idx

    def wait(self, tag):
        n = self.count_after(tag)
        idx = len(self.q) - n
        self.q = self.q[idx:]
        assert n <= 63
        return n

    def copy(self):
        c = VmQ()
        c.q = list(self.q)
        return c
```

```python
import sys, os, struct
sys.path.insert(0, os.path.dirname(os.path.abspath(__file__)))
from asmlib import Asm, VmQ, V, S

NAME = "parallel_sum__mha_block_cached__geglu_ffn__decode_kernel"

DEFAULT = dict(
    D=4,
    D0=2,
    kpol="nt",
    wpol="",
    stamps=0,
    spin=400000,
    early_proj=0,
)

WS_EP = 0
WS_H0 = 4096
WS_H2 = WS_H0 + 160 * 8 * 1024
WS_H3 = WS_H2 + 256 * 2048
WS_ST = WS_H3 + 256 * 1280
WS_END = WS_ST + 256 * 8 * 16 * 8

L_XN = 0
L_Q = 2560
L_MX = 3072
L_LS = 3104
L_FP = 4096
L_P = 12288
L_VEC = 24576
L_Y = 25600
LDS_BYTES = 32768

s_w, s_h, s_j, s_b, s_non = 3, 4, 5, 6, 7
s_t0, s_t1, s_t2, s_t3, s_t4, s_t5 = 8, 9, 10, 11, 12, 13
s_ep, s_spin = 14, 15
p_x, p_k, p_v, p_wq, p_wo, p_bx, p_gate, p_up = 16, 18, 20, 22, 24, 26, 28, 30
p_down, p_out, p_dbg, p_ws = 32, 34, 36, 38
R_K, R_V, R_W, R_WO, R_DN, R_WS, R_X, R_OUT = 40, 44, 48, 52, 56, 60, 64, 68
s_ko = 72
s_sel0, s_sel1 = 73, 74
s_scale, s_l2e = 75, 76
s_rs = 77
s_g0 = 78
s_msk = 82
s_u0 = 84
s_tm = 92
s_sto = 94
s_hi = 95

v_tid = 0
v_l = 1
v_ko = 2
v_m = 3
v_l16 = 7
v_t = 8
v_mx = 24
v_ls = 25
v_pa = 26
v_xr = 27
v_a = 28
v_q = 36
v_s = 48
v_acc = 64
v_ff = 76
v_pw = 84
v_w = 116
v_xp = 156
v_d = 166
v_r = 176
NV = 256


def f32(x):
    return "0x%08x" % struct.unpack("<I", struct.pack("<f", x))[0]


def gen(cfg):
    c = dict(DEFAULT)
    c.update(cfg)
    D, D0 = c["D"], c["D0"]
    kpol = (" " + c["kpol"]) if c["kpol"] else ""
    wpol = (" " + c["wpol"]) if c["wpol"] else ""
    a = Asm()
    ring = lambda slot, k=0, n=1: V(v_r + 12 * slot + k, n)
    assert v_r + 12 * D <= NV

    def stamp(idx):
        if not c["stamps"]:
            return
        a(f"s_memrealtime {S(s_tm, 2)}")
        a("s_waitcnt lgkmcnt(0)")
        a(f"v_mov_b32 {V(v_t + 14)}, {S(s_tm)}")
        a(f"v_mov_b32 {V(v_t + 15)}, {S(s_tm + 1)}")
        a(f"v_mov_b32 {V(v_t + 13)}, 0")
        a("s_mov_b64 exec, 1")
        a(f"buffer_store_dwordx2 {V(v_t + 14, 2)}, {V(v_t + 13)}, {S(R_WS, 4)}, {S(s_sto)} offen offset:{idx * 8}")
        a("s_mov_b64 exec, -1")
        a("s_nop 1")

    def srd(r, ptr, off_sgpr, nrec):
        if off_sgpr is None:
            a(f"s_mov_b32 {S(r)}, {S(ptr)}")
            a(f"s_mov_b32 {S(r + 1)}, {S(ptr + 1)}")
        else:
            a(f"s_add_u32 {S(r)}, {S(ptr)}, {S(off_sgpr)}")
            a(f"s_addc_u32 {S(r + 1)}, {S(ptr + 1)}, 0")
        a(f"s_mov_b32 {S(r + 2)}, {nrec}")
        a(f"s_mov_b32 {S(r + 3)}, 0x20000")

    def kv_load(q, g, slot):
        r = R_K if g < 16 else R_V
        gi = g % 16
        a(f"s_mov_b32 {S(s_ko)}, {gi * 24576}")
        for t in range(3):
            off = f" offset:{128 * t}" if t else ""
            a(f"buffer_load_dwordx4 {ring(slot, 4 * t, 4)}, {V(v_ko)}, {S(r, 4)}, {S(s_ko)} offen{off}{kpol}")
        q.issue(f"g{g}", 3)

    def spin_check(lbl_retry, lbl_go):
        a(f"s_cbranch_scc1 {lbl_go}")
        a(f"s_sub_u32 {S(s_spin)}, {S(s_spin)}, 1")
        a(f"s_cmp_lg_u32 {S(s_spin)}, 0")
        a(f"s_cbranch_scc1 {lbl_retry}")
        a.label(lbl_go)

    def allsum(reg, tmp, op="add"):
        o = f"v_{op}_f32"
        a(f"{o}_dpp {V(reg)}, {V(reg)}, {V(reg)} row_ror:8 row_mask:0xf bank_mask:0xf")
        a(f"v_mov_b32 {V(tmp)}, {V(reg)}")
        a(f"v_permlane16_swap_b32 {V(tmp)}, {V(reg)}")
        a(f"{o} {V(reg)}, {V(reg)}, {V(tmp)}")
        a(f"v_mov_b32 {V(tmp)}, {V(reg)}")
        a(f"v_permlane32_swap_b32 {V(tmp)}, {V(reg)}")
        a(f"{o} {V(reg)}, {V(reg)}, {V(tmp)}")

    def aprep(dst, dup):
        for k in range(4):
            a(f"v_and_b32 {V(dst + k)}, {V(dup)}, {V(v_m + k)}")

    T = lambda k: V(v_t + k)

    a.label(NAME)
    a(f"s_cmpk_ge_u32 s2, 0x100")
    a("s_cbranch_scc1 L_end")
    a(f"s_load_dwordx16 {S(16, 16)}, s[0:1], 0x0")
    a(f"s_load_dwordx8 {S(32, 8)}, s[0:1], 0x40")
    if c["stamps"]:
        a(f"s_memrealtime {S(s_u0 + 6, 2)}")
    a(f"v_lshrrev_b32 {T(0)}, 6, v0")
    a(f"v_and_b32 {V(v_l)}, 63, v0")
    a(f"s_and_b32 {S(s_t0)}, s2, 7")
    a(f"v_readfirstlane_b32 {S(s_w)}, {T(0)}")
    a(f"s_lshr_b32 {S(s_t1)}, s2, 3")
    a(f"s_and_b32 {S(s_t2)}, {S(s_t1)}, 3")
    a(f"s_lshl2_add_u32 {S(s_h)}, {S(s_t0)}, {S(s_t2)}")
    a(f"s_lshr_b32 {S(s_j)}, {S(s_t1)}, 2")
    a(f"s_and_b32 {S(s_b)}, {S(s_j)}, 1")
    a(f"s_lshr_b32 {S(s_t0)}, {S(s_j)}, 1")
    a(f"s_lshl_b32 {S(s_t1)}, {S(s_b)}, 5")
    a(f"s_add_u32 {S(s_t1)}, {S(s_t1)}, {S(s_h)}")
    a(f"s_lshl2_add_u32 {S(s_t1)}, {S(s_t1)}, {S(s_t0)}")
    a(f"s_mul_i32 {S(s_t1)}, {S(s_t1)}, 0x60000")
    a(f"s_mul_i32 {S(s_t2)}, {S(s_w)}, 3072")
    a(f"s_add_u32 {S(s_t1)}, {S(s_t1)}, {S(s_t2)}")
    a(f"v_lshrrev_b32 {T(1)}, 3, {V(v_l)}")
    a(f"v_and_b32 {T(2)}, 7, {V(v_l)}")
    a(f"v_lshlrev_b32 {T(3)}, 4, {T(2)}")
    a(f"v_mul_u32_u24 {V(v_ko)}, 384, {T(1)}")
    a(f"v_add_u32 {V(v_ko)}, {V(v_ko)}, {T(3)}")
    a(f"v_lshlrev_b32 {V(v_l16)}, 4, {V(v_l)}")
    a("s_waitcnt lgkmcnt(0)")
    a(f"s_load_dword {S(s_ep)}, {S(p_ws, 2)}, 0x0")
    srd(R_K, p_k, s_t1, 0x60000)
    srd(R_V, p_v, s_t1, 0x60000)
    srd(R_WS, p_ws, None, WS_END)
    q = VmQ()
    a(f"s_cmp_lt_u32 {S(s_w)}, 5")
    a("s_cbranch_scc0 L_notgemv")
    a(f"s_cmp_lt_u32 {S(s_w)}, 3")
    a(f"s_cselect_b32 {S(s_t2)}, 4, 1")
    a(f"s_mul_i32 {S(s_rs)}, {S(s_t2)}, 3072")
    a(f"s_mul_i32 {S(s_t2)}, {S(s_t2)}, 96")
    a(f"s_cselect_b32 {S(s_t3)}, 128, 0")
    a(f"s_cselect_b64 {S(s_msk, 2)}, -1, 0")
    a(f"s_cselect_b32 {S(s_t4)}, {S(p_wq)}, {S(p_gate)}")
    a(f"s_cselect_b32 {S(s_t5)}, {S(p_wq + 1)}, {S(p_gate + 1)}")
    a(f"s_cmp_eq_u32 {S(s_w)}, 4")
    a(f"s_cselect_b32 {S(s_t4)}, {S(p_up)}, {S(s_t4)}")
    a(f"s_cselect_b32 {S(s_t5)}, {S(p_up + 1)}, {S(s_t5)}")
    a(f"s_or_b32 {S(s_msk)}, {S(s_msk)}, 0x3f3f3f3f")
    a(f"s_or_b32 {S(s_msk + 1)}, {S(s_msk + 1)}, 0x3f3f3f3f")
    a(f"s_mul_i32 {S(s_t2)}, {S(s_t2)}, {S(s_h)}")
    a(f"s_mul_i32 {S(s_t3)}, {S(s_t3)}, {S(s_w)}")
    a(f"s_add_u32 {S(s_t2)}, {S(s_t2)}, {S(s_t3)}")
    a(f"s_mul_i32 {S(s_t3)}, {S(s_rs)}, {S(s_j)}")
    a(f"s_mul_i32 {S(s_t3)}, {S(s_t3)}, 80")
    a(f"s_add_u32 {S(s_t2)}, {S(s_t2)}, {S(s_t3)}")
    a(f"s_add_u32 {S(R_W)}, {S(s_t4)}, {S(s_t2)}")
    a(f"s_addc_u32 {S(R_W + 1)}, {S(s_t5)}, 0")
    a(f"s_mul_i32 {S(R_W + 2)}, {S(s_rs)}, 80")
    a(f"s_mov_b32 {S(R_W + 3)}, 0x20000")
    a(f"s_mul_i32 {S(s_t3)}, {S(s_rs)}, 10")
    a(f"v_mul_u32_u24 {T(4)}, {S(s_t3)}, {T(1)}")
    a(f"v_add_u32 {T(4)}, {T(4)}, {T(3)}")
    a(f"s_mov_b32 {S(s_t2)}, 0")
    a(f"s_mov_b64 exec, {S(s_msk, 2)}")
    for u in range(10):
        a(f"buffer_load_dwordx4 {V(v_w + 4 * u, 4)}, {T(4)}, {S(R_W, 4)}, {S(s_t2)} offen{wpol}")
        if u < 9:
            a(f"s_add_u32 {S(s_t2)}, {S(s_t2)}, {S(s_rs)}")
    a("s_mov_b64 exec, -1")
    a("s_branch L_ring0")
    a.label("L_notgemv")
    a(f"s_cmp_eq_u32 {S(s_w)}, 7")
    a("s_cbranch_scc1 L_ring0")
    srd(R_X, p_x, None, 2560)
    a(f"s_sub_u32 {S(s_t2)}, {S(s_w)}, 5")
    a(f"s_mul_i32 {S(s_t2)}, {S(s_t2)}, 1280")
    a(f"v_lshlrev_b32 {T(4)}, 2, {V(v_l)}")
    for k in range(5):
        a(f"buffer_load_dword {V(v_w + k)}, {T(4)}, {S(R_X, 4)}, {S(s_t2)} offen offset:{256 * k}")
    a.label("L_ring0")
    for g in range(D0):
        kv_load(q, g, g % D)
    n_after_role = 3 * D0
    if c["stamps"]:
        a(f"s_lshl_b32 {S(s_sto)}, s2, 3")
        a(f"s_add_u32 {S(s_sto)}, {S(s_sto)}, {S(s_w)}")
        a(f"s_lshl_b32 {S(s_sto)}, {S(s_sto)}, 7")
        a(f"s_add_u32 {S(s_sto)}, {S(s_sto)}, {WS_ST}")
        a(f"s_mov_b32 {S(s_tm)}, {S(s_u0 + 6)}")
        a(f"s_mov_b32 {S(s_tm + 1)}, {S(s_u0 + 7)}")
        a(f"v_mov_b32 {V(v_t + 14)}, {S(s_tm)}")
        a(f"v_mov_b32 {V(v_t + 15)}, {S(s_tm + 1)}")
        a(f"v_mov_b32 {V(v_t + 13)}, 0")
        a("s_mov_b64 exec, 1")
        a(f"buffer_store_dwordx2 {V(v_t + 14, 2)}, {V(v_t + 13)}, {S(R_WS, 4)}, {S(s_sto)} offen offset:0")
        a("s_mov_b64 exec, -1")
        n_after_role += 1
        q.issue("st")
    a(f"s_mov_b32 {S(s_sel0)}, 0x01000100")
    a(f"s_mov_b32 {S(s_sel1)}, 0x03020302")
    a(f"s_mov_b32 {S(s_scale)}, {f32(192 ** -0.5)}")
    a(f"s_mov_b32 {S(s_l2e)}, {f32(1.4426950408889634)}")
    a(f"s_mov_b32 {S(s_hi)}, 0xffff0000")
    a(f"s_mov_b32 {S(s_t0)}, 0xffff")
    a(f"v_and_b32 {T(5)}, 1, {V(v_l)}")
    a(f"v_lshlrev_b32 {T(5)}, 4, {T(5)}")
    a(f"v_lshlrev_b32 {T(5)}, {T(5)}, {S(s_t0)}")
    a(f"v_bfe_u32 {T(6)}, {V(v_l)}, 1, 2")
    a(f"v_lshlrev_b32 {T(6)}, {T(6)}, 1")
    for k in range(4):
        a(f"v_bfe_i32 {T(7)}, {T(6)}, {k}, 1")
        a(f"v_and_b32 {V(v_m + k)}, {T(7)}, {T(5)}")
    a(f"s_sub_u32 {S(s_t2)}, {S(s_w)}, 5")
    a(f"s_cmp_lt_u32 {S(s_t2)}, 2")
    a("s_cbranch_scc0 L_b1")
    X = v_w
    F = v_w + 8
    a(f"s_waitcnt vmcnt({n_after_role})")
    for k in range(5):
        a(f"v_lshlrev_b32 {V(F + 2 * k)}, 16, {V(X + k)}")
        a(f"v_and_b32 {V(F + 2 * k + 1)}, {S(s_hi)}, {V(X + k)}")

    def wave_total(reg, sdst):
        for m in ("quad_perm:[1,0,3,2]", "quad_perm:[2,3,0,1]", "row_half_mirror", "row_mirror"):
            a(f"v_add_f32_dpp {V(reg)}, {V(reg)}, {V(reg)} {m} row_mask:0xf bank_mask:0xf")
        a(f"v_add_f32_dpp {V(reg)}, {V(reg)}, {V(reg)} row_bcast:15 row_mask:0xa bank_mask:0xf")
        a(f"v_add_f32_dpp {V(reg)}, {V(reg)}, {V(reg)} row_bcast:31 row_mask:0xc bank_mask:0xf")
        a(f"v_readlane_b32 {S(sdst)}, {V(reg)}, 63")

    a(f"v_add_f32 {T(8)}, {V(F)}, {V(F + 1)}")
    for k in range(2, 10):
        a(f"v_add_f32 {T(8)}, {T(8)}, {V(F + k)}")
    wave_total(v_t + 8, s_t3)
    a(f"v_mov_b32 {T(9)}, {f32(1 / 640)}")
    a(f"v_mul_f32 {T(8)}, {S(s_t3)}, {T(9)}")
    a(f"v_sub_f32 {T(10)}, {V(F)}, {T(8)}")
    a(f"v_mul_f32 {T(11)}, {T(10)}, {T(10)}")
    for k in range(1, 10):
        a(f"v_sub_f32 {T(10)}, {V(F + k)}, {T(8)}")
        a(f"v_fmac_f32 {T(11)}, {T(10)}, {T(10)}")
    wave_total(v_t + 11, s_t3)
    a(f"v_mul_f32 {T(11)}, {S(s_t3)}, {T(9)}")
    a(f"v_cvt_pk_bf16_f32 {T(11)}, {T(11)}, {T(8)}")
    a(f"v_and_b32 {T(8)}, {S(s_hi)}, {T(11)}")
    a(f"v_lshlrev_b32 {T(11)}, 16, {T(11)}")
    a(f"v_add_f32 {T(11)}, {f32(1e-5)}, {T(11)}")
    a(f"v_cvt_pk_bf16_f32 {T(11)}, {T(11)}, {T(11)}")
    a(f"v_lshlrev_b32 {T(11)}, 16, {T(11)}")
    a(f"v_sqrt_f32 {T(11)}, {T(11)}")
    a(f"v_cvt_pk_bf16_f32 {T(11)}, {T(11)}, {T(11)}")
    a(f"v_lshlrev_b32 {T(11)}, 16, {T(11)}")
    a(f"v_rcp_f32 {T(12)}, {T(11)}")
    a(f"s_mul_i32 {S(s_t2)}, {S(s_t2)}, 1280")
    a(f"v_lshlrev_b32 {T(4)}, 2, {V(v_l)}")
    a(f"v_add_u32 {T(4)}, {S(s_t2)}, {T(4)}")
    for k in range(5):
        lo, hi = F + 2 * k, F + 2 * k + 1
        a(f"v_sub_f32 {V(lo)}, {V(lo)}, {T(8)}")
        a(f"v_sub_f32 {V(hi)}, {V(hi)}, {T(8)}")
        a(f"v_cvt_pk_bf16_f32 {T(9)}, {V(lo)}, {V(hi)}")
        a(f"v_lshlrev_b32 {V(lo)}, 16, {T(9)}")
        a(f"v_and_b32 {V(hi)}, {S(s_hi)}, {T(9)}")
        a(f"v_mul_f32 {T(9)}, {V(lo)}, {T(12)}")
        a(f"v_mul_f32 {T(10)}, {V(hi)}, {T(12)}")
        a(f"v_fma_f32 {V(lo)}, -{T(9)}, {T(11)}, {V(lo)}")
        a(f"v_fma_f32 {V(hi)}, -{T(10)}, {T(11)}, {V(hi)}")
        a(f"v_fmac_f32 {T(9)}, {V(lo)}, {T(12)}")
        a(f"v_fmac_f32 {T(10)}, {V(hi)}, {T(12)}")
        a(f"v_cvt_pk_bf16_f32 {T(9)}, {T(9)}, {T(10)}")
        a(f"ds_write_b32 {T(4)}, {T(9)} offset:{L_XN + 256 * k}")
    a.label("L_b1")
    a("s_waitcnt lgkmcnt(0)")
    a("s_barrier")
    stamp(1)
    a(f"s_mul_i32 {S(s_non)}, {S(s_ep)}, 0x9E3779B1")
    a(f"s_add_u32 {S(s_non)}, {S(s_non)}, 0x7F4A7C15")
    a(f"s_mov_b32 {S(s_spin)}, {c['spin']}")
    a(f"s_cmp_lt_u32 {S(s_w)}, 5")
    a("s_cbranch_scc0 L_b2")
    a(f"v_bfe_u32 {T(1)}, {V(v_l)}, 3, 1")
    a(f"v_lshrrev_b32 {T(2)}, 4, {V(v_l)}")
    a(f"v_mul_u32_u24 {T(1)}, 1280, {T(1)}")
    a(f"v_mul_u32_u24 {T(2)}, 40, {T(2)}")
    a(f"s_mul_i32 {S(s_t0)}, {S(s_j)}, 160")
    a(f"v_add3_u32 {T(1)}, {T(1)}, {T(2)}, {S(s_t0)}")
    for k in range(5):
        a(f"ds_read_b64 {V(v_xp + 2 * k, 2)}, {T(1)} offset:{L_XN + 8 * k}")
    a("s_waitcnt lgkmcnt(0)")
    D1, D2 = v_d, v_d + 4
    for u in range(10):
        sel = s_sel1 if (u & 1) else s_sel0
        a(f"v_perm_b32 {T(2)}, {V(v_xp + (u >> 1))}, {V(v_xp + (u >> 1))}, {S(sel)}")
        a(f"v_perm_b32 {T(3)}, {V(v_xp + 5 + (u >> 1))}, {V(v_xp + 5 + (u >> 1))}, {S(sel)}")
        aprep(v_a, v_t + 2)
        aprep(v_a + 4, v_t + 3)
        a(f"s_waitcnt vmcnt({9 - u + n_after_role + (1 if c['stamps'] else 0)})")
        c1 = "0" if u == 0 else V(D1, 4)
        c2 = "0" if u == 0 else V(D2, 4)
        a(f"v_mfma_f32_16x16x32_bf16 {V(D1, 4)}, {V(v_a, 4)}, {V(v_w + 4 * u, 4)}, {c1}")
        a(f"v_mfma_f32_16x16x32_bf16 {V(D2, 4)}, {V(v_a + 4, 4)}, {V(v_w + 4 * u, 4)}, {c2}")
    PUB = v_t + 4
    a(f"v_mov_b32 {V(PUB + 1)}, {S(s_non)}")
    a(f"v_mov_b32 {V(PUB + 3)}, {S(s_non)}")
    a(f"s_mul_i32 {S(s_t0)}, {S(s_h)}, 3")
    a(f"s_lshl_b32 {S(s_t1)}, {S(s_h)}, 1")
    a(f"s_add_u32 {S(s_t1)}, {S(s_t1)}, 93")
    a(f"s_cmp_lt_u32 {S(s_w)}, 3")
    a(f"s_cselect_b32 {S(s_t0)}, {S(s_t0)}, {S(s_t1)}")
    a(f"s_add_u32 {S(s_t0)}, {S(s_t0)}, {S(s_w)}")
    a(f"s_lshl_b32 {S(s_t0)}, {S(s_t0)}, 13")
    a(f"s_add_u32 {S(s_t0)}, {S(s_t0)}, {WS_H0}")
    a(f"s_lshl_b32 {S(s_t1)}, {S(s_j)}, 10")
    a(f"s_add_u32 {S(s_t1)}, {S(s_t1)}, {S(s_t0)}")
    a(f"v_add_f32_dpp {V(PUB)}, {V(D2)}, {V(D1)} row_ror:8 row_mask:0xf bank_mask:0x3")
    a(f"v_add_f32_dpp {V(PUB + 2)}, {V(D2 + 1)}, {V(D1 + 1)} row_ror:8 row_mask:0xf bank_mask:0x3")
    a(f"v_add_f32_dpp {V(PUB)}, {V(D1 + 2)}, {V(D2 + 2)} row_ror:8 row_mask:0xf bank_mask:0xc")
    a(f"v_add_f32_dpp {V(PUB + 2)}, {V(D1 + 3)}, {V(D2 + 3)} row_ror:8 row_mask:0xf bank_mask:0xc")
    a(f"buffer_store_dwordx4 {V(PUB, 4)}, {V(v_l16)}, {S(R_WS, 4)}, {S(s_t1)} offen sc1")
    stamp(2)
    a(f"s_cmp_lt_u32 {S(s_w)}, 3")
    a("s_cbranch_scc0 L_b2")
    G = v_w
    a(f"v_lshrrev_b32 {T(1)}, 5, {V(v_l)}")
    a(f"v_and_b32 {T(2)}, 31, {V(v_l)}")
    a(f"v_lshlrev_b32 {T(1)}, 10, {T(1)}")
    a(f"v_lshl_add_u32 {T(1)}, {T(2)}, 4, {T(1)}")
    a(f"s_lshl_b32 {S(s_t1)}, {S(s_b)}, 9")
    a(f"s_add_u32 {S(s_t0)}, {S(s_t0)}, {S(s_t1)}")
    a(f"s_add_u32 {S(s_t1)}, {S(s_t0)}, 4096")
    a.label("L_gq")
    for u in range(4):
        so = s_t0 if u < 2 else s_t1
        off = " offset:2048" if (u & 1) else ""
        a(f"buffer_load_dwordx4 {V(G + 4 * u, 4)}, {T(1)}, {S(R_WS, 4)}, {S(so)} offen{off} sc1")
    a("s_waitcnt vmcnt(0)")
    for u in range(4):
        a(f"v_cmpx_eq_u32 vcc, {S(s_non)}, {V(G + 4 * u + 1)}")
        a(f"v_cmpx_eq_u32 vcc, {S(s_non)}, {V(G + 4 * u + 3)}")
    a("s_cmp_eq_u64 exec, -1")
    a("s_mov_b64 exec, -1")
    spin_check("L_gq", "L_gq_ok")
    for k in (0, 2):
        a(f"v_add_f32 {V(G + k)}, {V(G + k)}, {V(G + 4 + k)}")
        a(f"v_add_f32 {V(G + 8 + k)}, {V(G + 8 + k)}, {V(G + 12 + k)}")
    for k in (0, 2):
        a(f"v_add_f32 {V(G + k)}, {V(G + k)}, {V(G + 8 + k)}")
    for k in (0, 2):
        a(f"v_mov_b32 {V(G + k + 1)}, {V(G + k)}")
    for k in (0, 2):
        a(f"v_permlane32_swap_b32 {V(G + k + 1)}, {V(G + k)}")
    for k in (0, 2):
        a(f"v_add_f32 {V(G + k)}, {V(G + k)}, {V(G + k + 1)}")
    a(f"v_cvt_pk_bf16_f32 {V(G)}, {V(G)}, {V(G + 2)}")
    a(f"v_and_b32 {T(1)}, 7, {V(v_l)}")
    a(f"v_lshlrev_b32 {T(1)}, 4, {T(1)}")
    a(f"v_bfe_u32 {T(2)}, {V(v_l)}, 4, 1")
    a(f"v_lshl_add_u32 {T(1)}, {T(2)}, 3, {T(1)}")
    a(f"v_bfe_u32 {T(2)}, {V(v_l)}, 3, 1")
    a(f"v_lshl_add_u32 {T(1)}, {T(2)}, 2, {T(1)}")
    a(f"s_lshl_b32 {S(s_t0)}, {S(s_w)}, 7")
    a(f"v_add_u32 {T(1)}, {S(s_t0)}, {T(1)}")
    a(f"ds_write_b32 {T(1)}, {V(G)} offset:{L_Q}")
    a.label("L_b2")
    a("s_waitcnt lgkmcnt(0)")
    a("s_barrier")
    stamp(3)
    a(f"v_and_b32 {T(1)}, 7, {V(v_l)}")
    a(f"v_lshlrev_b32 {T(1)}, 4, {T(1)}")
    for t in range(3):
        a(f"ds_read_b128 {V(v_q + 4 * t, 4)}, {T(1)} offset:{L_Q + 128 * t}")
    for g in range(D0, D):
        kv_load(q, g, g % D)
    a(f"s_lshl_b32 {S(s_t0)}, {S(s_h)}, 1")
    a(f"s_add_u32 {S(s_t0)}, {S(s_t0)}, 96")
    a(f"s_lshl_b32 {S(s_t0)}, {S(s_t0)}, 3")
    a(f"s_add_u32 {S(s_t0)}, {S(s_t0)}, {S(s_w)}")
    a(f"s_lshl_b32 {S(s_t0)}, {S(s_t0)}, 10")
    a(f"s_add_u32 {S(s_g0)}, {S(s_t0)}, {WS_H0}")
    a(f"s_add_u32 {S(s_g0 + 1)}, {S(s_g0)}, 8192")
    a(f"buffer_load_dwordx4 {V(v_ff, 4)}, {V(v_l16)}, {S(R_WS, 4)}, {S(s_g0)} offen sc1")
    a(f"buffer_load_dwordx4 {V(v_ff + 4, 4)}, {V(v_l16)}, {S(R_WS, 4)}, {S(s_g0 + 1)} offen sc1")
    q.issue("ff", 2)
    a(f"s_mul_i32 {S(s_t0)}, {S(s_h)}, 192")
    a(f"s_mul_i32 {S(s_t1)}, {S(s_w)}, 24")
    a(f"s_add_u32 {S(s_t0)}, {S(s_t0)}, {S(s_t1)}")
    a(f"s_mul_i32 {S(s_t0)}, {S(s_t0)}, 1280")
    a(f"s_mul_i32 {S(s_t2)}, {S(s_j)}, 160")
    a(f"s_add_u32 {S(s_t0)}, {S(s_t0)}, {S(s_t2)}")
    srd(R_WO, p_wo, s_t0, 24 * 1280)
    a(f"s_mul_i32 {S(s_t0)}, {S(s_h)}, 48")
    a(f"s_lshl_b32 {S(s_t1)}, {S(s_w)}, 3")
    a(f"s_add_u32 {S(s_t0)}, {S(s_t0)}, {S(s_t1)}")
    a(f"s_mul_i32 {S(s_t0)}, {S(s_t0)}, 1280")
    a(f"s_add_u32 {S(s_t0)}, {S(s_t0)}, {S(s_t2)}")
    srd(R_DN, p_down, s_t0, 8 * 1280)
    a(f"v_lshrrev_b32 {T(2)}, 4, {V(v_l)}")
    a(f"v_and_b32 {T(3)}, 15, {V(v_l)}")
    a(f"v_lshlrev_b32 {T(3)}, 4, {T(3)}")
    a(f"v_mul_u32_u24 {T(4)}, 7680, {T(2)}")
    a(f"v_add_u32 {T(4)}, {T(4)}, {T(3)}")
    a(f"v_mul_u32_u24 {T(5)}, 2560, {T(2)}")
    a(f"v_add_u32 {T(5)}, {T(5)}, {T(3)}")
    a(f"s_mov_b32 {S(s_t0)}, 5120")
    a(f"s_mov_b32 {S(s_msk)}, 0x03ff03ff")
    a(f"s_mov_b32 {S(s_msk + 1)}, 0x03ff03ff")
    a(f"s_mov_b64 exec, {S(s_msk, 2)}")
    for u in range(6):
        so = "0" if u < 4 else S(s_t0)
        off = 1280 * (u % 4)
        o = f" offset:{off}" if off else ""
        a(f"buffer_load_dwordx4 {V(v_pw + 4 * u, 4)}, {T(4)}, {S(R_WO, 4)}, {so} offen{o}{wpol}")
    q.issue("pw", 6)
    a(f"s_cmp_lt_u32 {S(s_w)}, 6")
    a("s_cbranch_scc0 L_nodn")
    for u in range(2):
        o = " offset:1280" if u else ""
        a(f"buffer_load_dwordx4 {V(v_pw + 24 + 4 * u, 4)}, {T(5)}, {S(R_DN, 4)}, 0 offen{o}{wpol}")
    a.label("L_nodn")
    a("s_mov_b64 exec, -1")
    srd(R_X, p_x, None, 2560)
    a(f"s_and_b32 {S(s_t0)}, {S(s_h)}, 1")
    a(f"s_mul_i32 {S(s_t0)}, {S(s_t0)}, 640")
    a(f"s_bfe_u32 {S(s_t1)}, {S(s_h)}, 0x30001")
    a(f"s_mul_i32 {S(s_t1)}, {S(s_t1)}, 10")
    a(f"s_add_u32 {S(s_t0)}, {S(s_t0)}, {S(s_t1)}")
    a(f"s_mul_i32 {S(s_t1)}, {S(s_j)}, 80")
    a(f"s_add_u32 {S(s_t0)}, {S(s_t0)}, {S(s_t1)}")
    a(f"s_lshl_b32 {S(s_u0)}, {S(s_t0)}, 1")
    a(f"v_and_b32 {T(1)}, 7, {V(v_l)}")
    a(f"v_min_u32 {T(1)}, 4, {T(1)}")
    a(f"v_lshlrev_b32 {T(1)}, 2, {T(1)}")
    a(f"buffer_load_dword {V(v_xr)}, {T(1)}, {S(R_X, 4)}, {S(s_u0)} offen")
    q.issue("xr", 1)
    a(f"v_mov_b32 {V(v_mx)}, 0xff7fffff")
    a("s_waitcnt lgkmcnt(0)")
    for i in range(16):
        slot = i % D
        n = q.wait(f"g{i}")
        a(f"s_waitcnt vmcnt({n})")
        a0, a1, a2 = v_t, v_t + 1, v_t + 2
        for t, acc in enumerate((a0, a1, a2)):
            for k in range(4):
                src = "0" if k == 0 else V(acc)
                a(f"v_dot2_f32_bf16 {V(acc)}, {ring(slot, 4 * t + k)}, {V(v_q + 4 * t + k)}, {src}")
        kv_load(q, i + D, slot)
        a(f"v_add_f32 {V(a0)}, {V(a0)}, {V(a1)}")
        a(f"v_add_f32 {V(a0)}, {V(a0)}, {V(a2)}")
        for m in ("quad_perm:[1,0,3,2]", "quad_perm:[2,3,0,1]", "row_half_mirror"):
            a(f"v_add_f32_dpp {V(a0)}, {V(a0)}, {V(a0)} {m} row_mask:0xf bank_mask:0xf")
        a(f"v_cvt_pk_bf16_f32 {V(a0)}, {V(a0)}, {V(a0)}")
        a(f"v_lshlrev_b32 {V(a0)}, 16, {V(a0)}")
        a(f"v_mul_f32 {V(a0)}, {S(s_scale)}, {V(a0)}")
        a(f"v_cvt_pk_bf16_f32 {V(a0)}, {V(a0)}, {V(a0)}")
        a(f"v_and_b32 {V(v_s + i)}, {S(s_hi)}, {V(a0)}")
        a(f"v_max_f32 {V(v_mx)}, {V(v_mx)}, {V(v_s + i)}")
        if i == 7:
            stamp(4)
    stamp(5)
    allsum(v_mx, v_t, "max")
    a(f"s_lshl_b32 {S(s_t0)}, {S(s_w)}, 2")
    a(f"v_mov_b32 {T(1)}, {S(s_t0)}")
    a("s_mov_b64 exec, 1")
    a(f"ds_write_b32 {T(1)}, {V(v_mx)} offset:{L_MX}")
    a("s_mov_b64 exec, -1")
    a.label("L_ffchk")
    a(f"s_mov_b32 {S(s_msk)}, 0x3f3f3f3f")
    a(f"s_mov_b32 {S(s_msk + 1)}, 0x3f3f3f3f")
    a(f"s_mov_b64 exec, {S(s_msk, 2)}")
    for k in (1, 3, 5, 7):
        a(f"v_cmpx_eq_u32 vcc, {S(s_non)}, {V(v_ff + k)}")
    a(f"s_cmp_eq_u64 exec, {S(s_msk, 2)}")
    a("s_mov_b64 exec, -1")
    a("s_cbranch_scc1 L_ffok")
    a(f"buffer_load_dwordx4 {V(v_ff, 4)}, {V(v_l16)}, {S(R_WS, 4)}, {S(s_g0)} offen sc1")
    a(f"buffer_load_dwordx4 {V(v_ff + 4, 4)}, {V(v_l16)}, {S(R_WS, 4)}, {S(s_g0 + 1)} offen sc1")
    a("s_waitcnt vmcnt(0)")
    a(f"s_sub_u32 {S(s_spin)}, {S(s_spin)}, 1")
    a(f"s_cmp_lg_u32 {S(s_spin)}, 0")
    a("s_cbranch_scc1 L_ffchk")
    a.label("L_ffok")
    a(f"v_lshlrev_b32 {T(1)}, 3, {V(v_l)}")
    a(f"s_lshl_b32 {S(s_t0)}, {S(s_w)}, 10")
    a(f"v_add_u32 {T(1)}, {S(s_t0)}, {T(1)}")
    a(f"v_mov_b32 {V(v_ff + 1)}, {V(v_ff + 2)}")
    a(f"v_mov_b32 {V(v_ff + 5)}, {V(v_ff + 6)}")
    a(f"ds_write_b64 {T(1)}, {V(v_ff, 2)} offset:{L_FP}")
    a(f"ds_write_b64 {T(1)}, {V(v_ff + 4, 2)} offset:{L_FP + 512}")
    a("s_waitcnt lgkmcnt(0)")
    a("s_barrier")
    a(f"v_mov_b32 {T(1)}, 0")
    a(f"ds_read_b128 {V(v_t + 4, 4)}, {T(1)} offset:{L_MX}")
    a(f"ds_read_b128 {V(v_t + 8, 4)}, {T(1)} offset:{L_MX + 16}")
    a(f"v_lshrrev_b32 {T(2)}, 5, {V(v_l)}")
    a(f"s_lshl_b32 {S(s_t0)}, {S(s_w)}, 1")
    a(f"v_add_u32 {T(2)}, {S(s_t0)}, {T(2)}")
    a(f"v_mul_u32_u24 {V(v_pa)}, 768, {T(2)}")
    a(f"v_and_b32 {T(2)}, 7, {V(v_l)}")
    a(f"v_lshl_add_u32 {V(v_pa)}, {T(2)}, 5, {V(v_pa)}")
    a(f"v_bfe_u32 {T(2)}, {V(v_l)}, 4, 1")
    a(f"v_lshl_add_u32 {V(v_pa)}, {T(2)}, 4, {V(v_pa)}")
    a("s_waitcnt lgkmcnt(0)")
    a(f"v_max3_f32 {T(4)}, {T(4)}, {T(5)}, {T(6)}")
    a(f"v_max3_f32 {T(7)}, {T(7)}, {T(8)}, {T(9)}")
    a(f"v_max3_f32 {T(4)}, {T(4)}, {T(10)}, {T(11)}")
    a(f"v_max_f32 {V(v_mx)}, {T(4)}, {T(7)}")
    a(f"v_mul_f32 {T(4)}, {S(s_l2e)}, {V(v_mx)}")
    a(f"v_sub_f32 {T(4)}, 0, {T(4)}")
    for i in range(16):
        a(f"v_fma_f32 {V(v_s + i)}, {V(v_s + i)}, {S(s_l2e)}, {T(4)}")
    for i in range(16):
        a(f"v_exp_f32 {V(v_s + i)}, {V(v_s + i)}")
    a(f"v_add_f32 {V(v_ls)}, {V(v_s)}, {V(v_s + 1)}")
    for i in range(2, 16):
        a(f"v_add_f32 {V(v_ls)}, {V(v_ls)}, {V(v_s + i)}")
    for i in range(16):
        a(f"v_cvt_pk_bf16_f32 {V(v_s + i)}, {V(v_s + i)}, {V(v_s + i)}")
    allsum(v_ls, v_t, "add")
    a(f"s_lshl_b32 {S(s_t0)}, {S(s_w)}, 2")
    a(f"v_mov_b32 {T(1)}, {S(s_t0)}")
    a("s_mov_b64 exec, 1")
    a(f"ds_write_b32 {T(1)}, {V(v_ls)} offset:{L_LS}")
    a("s_mov_b64 exec, -1")
    stamp(6)
    for i in range(16):
        g = 16 + i
        slot = g % D
        A = v_a + 4 * (i & 1)
        aprep(A, v_s + i)
        n = q.wait(f"g{g}")
        a(f"s_waitcnt vmcnt({n})")
        for t in range(3):
            cacc = "0" if i == 0 else V(v_acc + 4 * t, 4)
            a(f"v_mfma_f32_16x16x32_bf16 {V(v_acc + 4 * t, 4)}, {V(A, 4)}, {ring(slot, 4 * t, 4)}, {cacc}")
        if g + D < 32:
            kv_load(q, g + D, slot)
        if i == 7:
            stamp(7)
    stamp(8)
    a("s_mov_b32 exec_lo, 0x00ff00ff")
    a("s_mov_b32 exec_hi, 0xff00ff00")
    for t in range(3):
        a(f"ds_write_b128 {V(v_pa)}, {V(v_acc + 4 * t, 4)} offset:{L_P + 256 * t}")
    a("s_mov_b64 exec, -1")
    a(f"s_lshl_b32 {S(s_t0)}, {S(s_h)}, 3")
    a(f"s_lshl_b32 {S(s_g0)}, {S(s_t0)}, 11")
    a(f"s_add_u32 {S(s_g0)}, {S(s_g0)}, {WS_H2}")
    a(f"s_lshl_b32 {S(s_t1)}, {S(s_j)}, 11")
    a(f"s_add_u32 {S(s_t1)}, {S(s_t1)}, {S(s_g0)}")
    for k in range(1, 4):
        a(f"s_add_u32 {S(s_g0 + k)}, {S(s_g0)}, {4096 * k}")
    a("s_waitcnt lgkmcnt(0)")
    a("s_barrier")
    stamp(9)
    G = v_r
    PUB = v_t + 4
    a(f"s_cmp_lt_u32 {S(s_w)}, 3")
    a("s_cbranch_scc0 L_notg2")
    a(f"s_cmp_eq_u32 {S(s_w)}, 2")
    a("s_cbranch_scc1 L_pubml")
    a(f"v_lshlrev_b32 {T(1)}, 3, v0")
    for k in range(16):
        a(f"ds_read_b64 {V(G + 2 * k, 2)}, {T(1)} offset:{L_P + 768 * k}")
    a(f"v_mov_b32 {V(PUB + 1)}, {S(s_non)}")
    a(f"v_mov_b32 {V(PUB + 3)}, {S(s_non)}")
    a(f"v_lshlrev_b32 {T(2)}, 4, v0")
    for st in (8, 4, 2):
        a(f"s_waitcnt lgkmcnt({0 if st != 8 else 0})") if st == 8 else None
        for k in range(st):
            a(f"v_pk_add_f32 {V(G + 2 * k, 2)}, {V(G + 2 * k, 2)}, {V(G + 2 * (k + st), 2)}")
    a(f"v_add_f32 {V(PUB)}, {V(G)}, {V(G + 2)}")
    a(f"v_add_f32 {V(PUB + 2)}, {V(G + 1)}, {V(G + 3)}")
    a(f"v_cmp_gt_u32 vcc, 96, v0")
    a(f"s_and_b64 exec, exec, vcc")
    a(f"buffer_store_dwordx4 {V(PUB, 4)}, {T(2)}, {S(R_WS, 4)}, {S(s_t1)} offen sc1")
    a("s_mov_b64 exec, -1")
    a("s_branch L_g2")
    a.label("L_pubml")
    a(f"v_mov_b32 {T(1)}, 0")
    a(f"ds_read_b128 {V(G, 4)}, {T(1)} offset:{L_LS}")
    a(f"ds_read_b128 {V(G + 4, 4)}, {T(1)} offset:{L_LS + 16}")
    a(f"v_mov_b32 {V(PUB)}, {V(v_mx)}")
    a(f"v_mov_b32 {V(PUB + 1)}, {S(s_non)}")
    a(f"v_mov_b32 {V(PUB + 3)}, {S(s_non)}")
    a(f"v_mov_b32 {T(2)}, 1536")
    a("s_waitcnt lgkmcnt(0)")
    a(f"v_pk_add_f32 {V(G, 2)}, {V(G, 2)}, {V(G + 2, 2)}")
    a(f"v_pk_add_f32 {V(G + 4, 2)}, {V(G + 4, 2)}, {V(G + 6, 2)}")
    a(f"v_pk_add_f32 {V(G, 2)}, {V(G, 2)}, {V(G + 4, 2)}")
    a(f"v_add_f32 {V(PUB + 2)}, {V(G)}, {V(G + 1)}")
    a("s_mov_b64 exec, 1")
    a(f"buffer_store_dwordx4 {V(PUB, 4)}, {T(2)}, {S(R_WS, 4)}, {S(s_t1)} offen sc1")
    a("s_mov_b64 exec, -1")
    a.label("L_g2")
    stamp(10)
    a(f"v_cmp_le_u32 vcc, 96, v0")
    a(f"v_cndmask_b32 {T(1)}, 0, 1, vcc")
    a(f"v_mul_u32_u24 {T(2)}, 96, {T(1)}")
    a(f"v_sub_u32 {T(2)}, v0, {T(2)}")
    a(f"v_lshlrev_b32 {T(3)}, 11, {T(1)}")
    a(f"v_lshl_add_u32 {T(8)}, {T(2)}, 4, {T(3)}")
    a(f"v_add_u32 {T(9)}, 1536, {T(3)}")
    a(f"v_mul_u32_u24 {T(10)}, 480, {T(1)}")
    a(f"v_lshl_add_u32 {T(10)}, {T(2)}, 2, {T(10)}")
    a.label("L_g2l")
    for k in range(4):
        a(f"buffer_load_dwordx4 {V(G + 16 + 4 * k, 4)}, {T(9)}, {S(R_WS, 4)}, {S(s_g0 + k)} offen sc1")
        a(f"buffer_load_dwordx4 {V(G + 4 * k, 4)}, {T(8)}, {S(R_WS, 4)}, {S(s_g0 + k)} offen sc1")
    a("s_waitcnt vmcnt(0)")
    for k in range(8):
        a(f"v_cmpx_eq_u32 vcc, {S(s_non)}, {V(G + 4 * k + 1)}")
        a(f"v_cmpx_eq_u32 vcc, {S(s_non)}, {V(G + 4 * k + 3)}")
    a("s_cmp_eq_u64 exec, -1")
    a("s_mov_b64 exec, -1")
    spin_check("L_g2l", "L_g2ok")
    M = lambda k: V(G + 16 + 4 * k)
    Ls = lambda k: V(G + 16 + 4 * k + 2)
    a(f"v_max3_f32 {T(1)}, {M(0)}, {M(1)}, {M(2)}")
    a(f"v_max_f32 {T(1)}, {T(1)}, {M(3)}")
    for k in range(4):
        a(f"v_sub_f32 {M(k)}, {M(k)}, {T(1)}")
    for k in range(4):
        a(f"v_mul_f32 {M(k)}, {S(s_l2e)}, {M(k)}")
    for k in range(4):
        a(f"v_exp_f32 {M(k)}, {M(k)}")
    a(f"v_mul_f32 {T(1)}, {M(0)}, {Ls(0)}")
    a(f"v_mul_f32 {T(2)}, {M(0)}, {V(G)}")
    a(f"v_mul_f32 {T(3)}, {M(0)}, {V(G + 2)}")
    for k in range(1, 4):
        a(f"v_fmac_f32 {T(1)}, {M(k)}, {Ls(k)}")
        a(f"v_fmac_f32 {T(2)}, {M(k)}, {V(G + 4 * k)}")
        a(f"v_fmac_f32 {T(3)}, {M(k)}, {V(G + 4 * k + 2)}")
    a(f"v_rcp_f32 {T(1)}, {T(1)}")
    a(f"v_mul_f32 {T(2)}, {T(2)}, {T(1)}")
    a(f"v_mul_f32 {T(3)}, {T(3)}, {T(1)}")
    a(f"v_cvt_pk_bf16_f32 {T(2)}, {T(2)}, {T(3)}")
    a(f"ds_write_b32 {T(10)}, {T(2)} offset:{L_VEC}")
    a("s_branch L_b4")
    a.label("L_notg2")
    a(f"s_cmp_eq_u32 {S(s_w)}, 3")
    a("s_cbranch_scc0 L_b4")
    a(f"v_lshlrev_b32 {T(1)}, 3, {V(v_l)}")
    for k in range(8):
        a(f"ds_read_b64 {V(G + 2 * k, 2)}, {T(1)} offset:{L_FP + 1024 * k}")
        a(f"ds_read_b64 {V(G + 16 + 2 * k, 2)}, {T(1)} offset:{L_FP + 1024 * k + 512}")
    a("s_waitcnt lgkmcnt(0)")
    for base in (G, G + 16):
        for st in (4, 2, 1):
            for k in range(st):
                a(f"v_pk_add_f32 {V(base + 2 * k, 2)}, {V(base + 2 * k, 2)}, {V(base + 2 * (k + st), 2)}")
    a(f"v_cvt_pk_bf16_f32 {T(2)}, {V(G)}, {V(G + 1)}")
    a(f"v_cvt_pk_bf16_f32 {T(3)}, {V(G + 16)}, {V(G + 17)}")
    g0, g1, u0, u1 = G, G + 1, G + 2, G + 3
    a(f"v_lshlrev_b32 {V(g0)}, 16, {T(2)}")
    a(f"v_and_b32 {V(g1)}, {S(s_hi)}, {T(2)}")
    a(f"v_lshlrev_b32 {V(u0)}, 16, {T(3)}")
    a(f"v_and_b32 {V(u1)}, {S(s_hi)}, {T(3)}")
    kz = -2.0 * 0.7978845608028654 * 1.4426950408889634
    a(f"v_mov_b32 {T(4)}, {f32(0.044715)}")
    a(f"v_mov_b32 {T(5)}, {f32(kz)}")
    for gg, tt in ((g0, 6), (g1, 7)):
        a(f"v_mul_f32 {T(tt)}, {V(gg)}, {V(gg)}")
        a(f"v_mul_f32 {T(tt)}, {T(tt)}, {V(gg)}")
        a(f"v_fma_f32 {T(tt)}, {T(tt)}, {T(4)}, {V(gg)}")
        a(f"v_mul_f32 {T(tt)}, {T(tt)}, {T(5)}")
        a(f"v_exp_f32 {T(tt)}, {T(tt)}")
        a(f"v_add_f32 {T(tt)}, 1.0, {T(tt)}")
        a(f"v_rcp_f32 {T(tt)}, {T(tt)}")
        a(f"v_mul_f32 {T(tt)}, {T(tt)}, {V(gg)}")
    a(f"v_cvt_pk_bf16_f32 {T(2)}, {T(6)}, {T(7)}")
    a(f"v_lshlrev_b32 {V(g0)}, 16, {T(2)}")
    a(f"v_and_b32 {V(g1)}, {S(s_hi)}, {T(2)}")
    a(f"v_mul_f32 {V(g0)}, {V(g0)}, {V(u0)}")
    a(f"v_mul_f32 {V(g1)}, {V(g1)}, {V(u1)}")
    a(f"v_cvt_pk_bf16_f32 {T(2)}, {V(g0)}, {V(g1)}")
    a(f"v_lshrrev_b32 {T(3)}, 5, {V(v_l)}")
    a(f"v_mul_u32_u24 {T(3)}, 480, {T(3)}")
    a(f"v_and_b32 {T(4)}, 7, {V(v_l)}")
    a(f"v_lshl_add_u32 {T(3)}, {T(4)}, 4, {T(3)}")
    a(f"v_bfe_u32 {T(4)}, {V(v_l)}, 4, 1")
    a(f"v_lshl_add_u32 {T(3)}, {T(4)}, 3, {T(3)}")
    a(f"v_bfe_u32 {T(4)}, {V(v_l)}, 3, 1")
    a(f"v_lshl_add_u32 {T(3)}, {T(4)}, 2, {T(3)}")
    a("s_mov_b32 exec_lo, 0x3f3f3f3f")
    a("s_mov_b32 exec_hi, 0x3f3f3f3f")
    a(f"ds_write_b32 {T(3)}, {T(2)} offset:{L_VEC + 384}")
    a("s_mov_b64 exec, -1")
    a.label("L_b4")
    a(f"v_bfe_u32 {T(1)}, {V(v_l)}, 3, 1")
    a(f"v_mul_u32_u24 {T(1)}, 480, {T(1)}")
    a(f"v_lshrrev_b32 {T(2)}, 4, {V(v_l)}")
    a(f"v_mul_u32_u24 {T(3)}, 12, {T(2)}")
    a(f"s_mul_i32 {S(s_t0)}, {S(s_w)}, 48")
    a(f"v_add3_u32 {T(3)}, {T(3)}, {T(1)}, {S(s_t0)}")
    a(f"v_lshlrev_b32 {T(2)}, 2, {T(2)}")
    a(f"s_lshl_b32 {S(s_t0)}, {S(s_w)}, 4")
    a(f"v_add3_u32 {T(2)}, {T(2)}, {T(1)}, {S(s_t0)}")
    a("s_waitcnt lgkmcnt(0)")
    a("s_barrier")
    stamp(11)
    a(f"ds_read2_b32 {V(v_t + 4, 2)}, {T(3)} offset0:0 offset1:1") if False else None
    a(f"v_add_u32 {T(3)}, {L_VEC}, {T(3)}")
    a(f"v_add_u32 {T(2)}, {L_VEC + 384}, {T(2)}")
    a(f"ds_read2_b32 {V(v_t + 4, 2)}, {T(3)} offset0:0 offset1:1")
    a(f"ds_read_b32 {T(6)}, {T(3)} offset:8")
    a(f"ds_read_b32 {T(7)}, {T(2)}")
    a(f"v_lshrrev_b32 {T(8)}, 5, {V(v_l)}")
    a(f"v_mul_u32_u24 {T(8)}, 320, {T(8)}")
    a(f"v_and_b32 {T(9)}, 15, {V(v_l)}")
    a(f"v_lshl_add_u32 {T(8)}, {T(9)}, 5, {T(8)}")
    a(f"v_bfe_u32 {T(9)}, {V(v_l)}, 4, 1")
    a(f"v_lshl_add_u32 {T(8)}, {T(9)}, 4, {T(8)}")
    a(f"s_mul_i32 {S(s_t0)}, {S(s_w)}, 640")
    a(f"v_add_u32 {T(8)}, {S(s_t0)}, {T(8)}")
    a("s_waitcnt lgkmcnt(0)")
    Y = v_acc
    for u in range(6):
        sel = s_sel1 if (u & 1) else s_sel0
        A = v_a + 4 * (u & 1)
        a(f"v_perm_b32 {T(1)}, {V(v_t + 4 + (u >> 1))}, {V(v_t + 4 + (u >> 1))}, {S(sel)}")
        aprep(A, v_t + 1)
        cacc = "0" if u == 0 else V(Y, 4)
        a(f"v_mfma_f32_16x16x32_bf16 {V(Y, 4)}, {V(A, 4)}, {V(v_pw + 4 * u, 4)}, {cacc}")
    a(f"s_cmp_lt_u32 {S(s_w)}, 6")
    a("s_cbranch_scc0 L_nodn2")
    for u in range(2):
        sel = s_sel1 if (u & 1) else s_sel0
        A = v_a + 4 * (u & 1)
        a(f"v_perm_b32 {T(1)}, {T(7)}, {T(7)}, {S(sel)}")
        aprep(A, v_t + 1)
        a(f"v_mfma_f32_16x16x32_bf16 {V(Y, 4)}, {V(A, 4)}, {V(v_pw + 24 + 4 * u, 4)}, {V(Y, 4)}")
    a.label("L_nodn2")
    a("s_nop 7")
    a("s_mov_b32 exec_lo, 0x03ff03ff")
    a("s_mov_b32 exec_hi, 0x03ff03ff")
    a(f"ds_write_b128 {T(8)}, {V(Y, 4)} offset:{L_Y}")
    a("s_mov_b64 exec, -1")
    a(f"s_lshl_b32 {S(s_t0)}, {S(s_j)}, 5")
    a(f"s_mul_i32 {S(s_g0)}, {S(s_t0)}, 1280")
    a(f"s_add_u32 {S(s_g0)}, {S(s_g0)}, {WS_H3}")
    a(f"s_mul_i32 {S(s_t1)}, {S(s_h)}, 1280")
    a(f"s_add_u32 {S(s_t1)}, {S(s_t1)}, {S(s_g0)}")
    a("s_waitcnt lgkmcnt(0)")
    a("s_barrier")
    stamp(12)
    a(f"s_cmp_lt_u32 {S(s_w)}, 2")
    a("s_cbranch_scc0 L_fin")
    a(f"v_lshlrev_b32 {T(1)}, 3, v0")
    for k in range(8):
        a(f"ds_read_b64 {V(G + 2 * k, 2)}, {T(1)} offset:{L_Y + 640 * k}")
    a(f"v_mov_b32 {V(PUB + 1)}, {S(s_non)}")
    a(f"v_mov_b32 {V(PUB + 3)}, {S(s_non)}")
    a(f"v_lshlrev_b32 {T(2)}, 4, v0")
    a("s_waitcnt lgkmcnt(0)")
    for st in (4, 2):
        for k in range(st):
            a(f"v_pk_add_f32 {V(G + 2 * k, 2)}, {V(G + 2 * k, 2)}, {V(G + 2 * (k + st), 2)}")
    a(f"v_add_f32 {V(PUB)}, {V(G)}, {V(G + 2)}")
    a(f"v_add_f32 {V(PUB + 2)}, {V(G + 1)}, {V(G + 3)}")
    a(f"v_cmp_gt_u32 vcc, 80, v0")
    a(f"s_and_b64 exec, exec, vcc")
    a(f"buffer_store_dwordx4 {V(PUB, 4)}, {T(2)}, {S(R_WS, 4)}, {S(s_t1)} offen sc1")
    stamp(13)
    a("s_endpgm")
    a.label("L_fin")
    a(f"s_cmp_eq_u32 {S(s_w)}, 2")
    a("s_cbranch_scc0 L_end")
    a(f"s_cmp_lt_u32 {S(s_h)}, 16")
    a("s_cbranch_scc0 L_end")
    a(f"s_and_b32 {S(s_t0)}, {S(s_h)}, 1")
    a(f"s_mul_i32 {S(s_t0)}, {S(s_t0)}, 640")
    a(f"s_lshr_b32 {S(s_t1)}, {S(s_h)}, 1")
    a(f"s_mul_i32 {S(s_t1)}, {S(s_t1)}, 80")
    a(f"s_add_u32 {S(s_t0)}, {S(s_t0)}, {S(s_t1)}")
    a(f"s_add_u32 {S(s_g0)}, {S(s_g0)}, {S(s_t0)}")
    for k in range(1, 4):
        a(f"s_add_u32 {S(s_g0 + k)}, {S(s_g0)}, {10240 * k}")
    a(f"v_lshrrev_b32 {T(1)}, 3, {V(v_l)}")
    a(f"v_mul_u32_u24 {T(1)}, 1280, {T(1)}")
    a(f"v_and_b32 {T(2)}, 7, {V(v_l)}")
    a(f"v_lshl_add_u32 {T(1)}, {T(2)}, 4, {T(1)}")
    a(f"s_mov_b32 {S(s_msk)}, 0x1f1f1f1f")
    a(f"s_mov_b32 {S(s_msk + 1)}, 0x1f1f1f1f")
    a.label("L_g3l")
    a(f"s_mov_b64 exec, {S(s_msk, 2)}")
    for k in range(4):
        a(f"buffer_load_dwordx4 {V(G + 4 * k, 4)}, {T(1)}, {S(R_WS, 4)}, {S(s_g0 + k)} offen sc1")
    a("s_waitcnt vmcnt(0)")
    for k in range(4):
        a(f"v_cmpx_eq_u32 vcc, {S(s_non)}, {V(G + 4 * k + 1)}")
        a(f"v_cmpx_eq_u32 vcc, {S(s_non)}, {V(G + 4 * k + 3)}")
    a(f"s_cmp_eq_u64 exec, {S(s_msk, 2)}")
    a("s_mov_b64 exec, -1")
    spin_check("L_g3l", "L_g3ok")
    for k in (0, 2):
        a(f"v_add_f32 {V(G + k)}, {V(G + k)}, {V(G + 4 + k)}")
        a(f"v_add_f32 {V(G + 8 + k)}, {V(G + 8 + k)}, {V(G + 12 + k)}")
    for k in (0, 2):
        a(f"v_add_f32 {V(G + k)}, {V(G + k)}, {V(G + 8 + k)}")
    allsum(G, v_t + 3, "add")
    allsum(G + 2, v_t + 4, "add")
    a(f"v_lshlrev_b32 {T(3)}, 16, {V(v_xr)}")
    a(f"v_and_b32 {T(4)}, {S(s_hi)}, {V(v_xr)}")
    a(f"v_add_f32 {T(3)}, {T(3)}, {V(G)}")
    a(f"v_add_f32 {T(4)}, {T(4)}, {V(G + 2)}")
    a(f"v_cvt_pk_bf16_f32 {T(3)}, {T(3)}, {T(4)}")
    srd(R_OUT, p_out, None, 2560)
    a(f"v_lshlrev_b32 {T(2)}, 2, {T(2)}")
    a("s_mov_b64 exec, 0x1f")
    a(f"buffer_store_dword {T(3)}, {T(2)}, {S(R_OUT, 4)}, {S(s_u0)} offen")
    a("s_cmp_eq_u32 s2, 0")
    a("s_cbranch_scc0 L_fin2")
    a("s_mov_b64 exec, 1")
    a(f"v_mov_b32 {T(5)}, {S(s_non)}")
    a(f"v_mov_b32 {T(6)}, 0")
    a(f"buffer_store_dword {T(5)}, {T(6)}, {S(R_WS, 4)}, 0 offen sc1")
    a.label("L_fin2")
    a("s_mov_b64 exec, -1")
    stamp(14)
    a.label("L_end")
    a("s_endpgm")

    body = a.finish()
    for p in a.problems:
        print("HAZARD-PROBLEM:", p, file=sys.stderr)
    hdr = open("parallel_sum__mha_block_cached__geglu_ffn__decode.s.ref").read().split("\n")
    top = [l for l in hdr if l.startswith(";") and "@launch" not in l and not l.startswith("; Override") and not l.startswith("; grid=")]
    lead = []
    for l in hdr:
        if not l.startswith(";"):
            break
        if "@launch" in l:
            continue
        lead.append(l)
    out = lead + [f"; @launch grid=(256,1,1) block=(512,1,1) lds={LDS_BYTES}"]
    out += ['.amdgcn_target "amdgcn-amd-amdhsa--gfx950"', ".text", f".globl {NAME}", ".p2align 8", f".type {NAME},@function"]
    out += [(l if l.endswith(":") else "    " + l) for l in body]
    out += ['.section .rodata,"a"', ".p2align 6", f".amdhsa_kernel {NAME}",
            f"  .amdhsa_next_free_vgpr {NV}", "  .amdhsa_next_free_sgpr 102", f"  .amdhsa_accum_offset {NV}",
            "  .amdhsa_group_segment_fixed_size 0", "  .amdhsa_kernarg_size 96", "  .amdhsa_user_sgpr_count 2",
            "  .amdhsa_user_sgpr_kernarg_segment_ptr 1", "  .amdhsa_system_sgpr_workgroup_id_x 1", ".end_amdhsa_kernel", ""]
    return "\n".join(out), a


if __name__ == "__main__":
    cfg = {}
    outp = "parallel_sum__mha_block_cached__geglu_ffn__decode.s"
    for arg in sys.argv[1:]:
        k, v = arg.split("=", 1)
        if k == "out":
            outp = v
        else:
            try:
                cfg[k] = int(v)
            except ValueError:
                cfg[k] = v
    txt, a = gen(cfg)
    open(outp, "w").write(txt)
    print(f"wrote {outp}: {len(txt.splitlines())} lines, {a.nfix} nops inserted")
```

```python
import sys, os, struct
sys.path.insert(0, os.path.dirname(os.path.abspath(__file__)))
from asmlib import Asm, VmQ, V, S

NAME = "parallel_sum__mha_block_cached__geglu_ffn__decode_kernel"

DEFAULT = dict(
    D=6,
    D0=0,
    kpol="nt",
    wpol="",
    stamps=0,
    spin=400000,
    prio="",
    ffstep=8,
    pwfirst=0,
    rot=0,
    skip="",
)

WS_EP = 0
WS_H0 = 4096
WS_H2 = WS_H0 + 160 * 8 * 1024
WS_H3 = WS_H2 + 256 * 2048
WS_ST = WS_H3 + 256 * 1280
WS_END = WS_ST + 256 * 8 * 16 * 8

L_XN = 0
L_Q = 2560
L_MX = 3072
L_LS = 3104
L_FP = 4096
L_P = 12288
L_VEC = 24576
L_Y = 25600
LDS_BYTES = 32768

s_w, s_h, s_j, s_b, s_non = 3, 4, 5, 6, 7
s_t0, s_t1, s_t2, s_t3, s_t4, s_t5 = 8, 9, 10, 11, 12, 13
s_ep, s_spin = 14, 15
p_x, p_k, p_v, p_wq, p_wo, p_bx, p_gate, p_up = 16, 18, 20, 22, 24, 26, 28, 30
p_down, p_out, p_dbg, p_ws = 32, 34, 36, 38
R_K, R_V, R_W, R_WO, R_DN, R_WS, R_X, R_OUT = 40, 44, 48, 52, 56, 60, 64, 68
s_ko = 72
s_sel0, s_sel1 = 73, 74
s_scale, s_l2e = 75, 76
s_rs = 77
s_g0 = 78
s_msk = 82
s_u0 = 84
s_tm = 92
s_sto = 94
s_hi = 95

v_tid = 0
v_l = 1
v_ko = 2
v_m = 3
v_l16 = 7
v_t = 8
v_mx = 24
v_ls = 25
v_pa = 26
v_xr = 27
v_a = 28
v_q = 36
v_s = 48
v_acc = 64
v_ff = 76
v_pw = 84
v_w = 116
v_xp = 156
v_d = 166
v_st = 175
v_r = 176
NV = 256


def f32(x):
    return "0x%08x" % struct.unpack("<I", struct.pack("<f", x))[0]


def gen(cfg):
    c = dict(DEFAULT)
    c.update(cfg)
    skip = set(str(c["skip"]).split("+"))
    D, D0 = c["D"], c["D0"]
    kpol = (" " + c["kpol"]) if c["kpol"] else ""
    wpol = (" " + c["wpol"]) if c["wpol"] else ""
    a = Asm()
    ring = lambda slot, k=0, n=1: V(v_r + 12 * slot + k, n)
    assert v_r + 12 * D <= NV

    def stamp(idx):
        if not c["stamps"]:
            return
        a(f"s_memrealtime {S(s_tm, 2)}")
        a("s_waitcnt lgkmcnt(0)")
        a(f"v_writelane_b32 {V(v_st)}, {S(s_tm)}, {idx}")

    def finish(lbl=None):
        if c["stamps"]:
            a("s_branch L_end")
        else:
            a("s_endpgm")

    def srd(r, ptr, off_sgpr, nrec):
        if off_sgpr is None:
            a(f"s_mov_b32 {S(r)}, {S(ptr)}")
            a(f"s_mov_b32 {S(r + 1)}, {S(ptr + 1)}")
        else:
            a(f"s_add_u32 {S(r)}, {S(ptr)}, {S(off_sgpr)}")
            a(f"s_addc_u32 {S(r + 1)}, {S(ptr + 1)}, 0")
        a(f"s_mov_b32 {S(r + 2)}, {nrec}")
        a(f"s_mov_b32 {S(r + 3)}, 0x20000")

    def kv_load(q, g, slot):
        r = R_K if g < 16 else R_V
        gi = g % 16
        a(f"s_mov_b32 {S(s_ko)}, {gi * 24576}")
        for t in range(3):
            off = f" offset:{128 * t}" if t else ""
            a(f"buffer_load_dwordx4 {ring(slot, 4 * t, 4)}, {V(v_ko)}, {S(r, 4)}, {S(s_ko)} offen{off}{kpol}")
        q.issue(f"g{g}", 3)

    def spin_check(lbl_retry, lbl_go):
        a(f"s_cbranch_scc1 {lbl_go}")
        a(f"s_sub_u32 {S(s_spin)}, {S(s_spin)}, 1")
        a(f"s_cmp_lg_u32 {S(s_spin)}, 0")
        a(f"s_cbranch_scc1 {lbl_retry}")
        a.label(lbl_go)

    def allsum(reg, tmp, op="add"):
        o = f"v_{op}_f32"
        a(f"{o}_dpp {V(reg)}, {V(reg)}, {V(reg)} row_ror:8 row_mask:0xf bank_mask:0xf")
        a(f"v_mov_b32 {V(tmp)}, {V(reg)}")
        a(f"v_permlane16_swap_b32 {V(tmp)}, {V(reg)}")
        a(f"{o} {V(reg)}, {V(reg)}, {V(tmp)}")
        a(f"v_mov_b32 {V(tmp)}, {V(reg)}")
        a(f"v_permlane32_swap_b32 {V(tmp)}, {V(reg)}")
        a(f"{o} {V(reg)}, {V(reg)}, {V(tmp)}")

    def aprep(dst, dup):
        for k in range(4):
            a(f"v_and_b32 {V(dst + k)}, {V(dup)}, {V(v_m + k)}")

    T = lambda k: V(v_t + k)

    a.label(NAME)
    a(f"s_cmpk_ge_u32 s2, 0x100")
    a("s_cbranch_scc1 L_exit")
    a(f"s_load_dwordx16 {S(16, 16)}, s[0:1], 0x0")
    a(f"s_load_dwordx8 {S(32, 8)}, s[0:1], 0x40")
    if c["stamps"]:
        a(f"s_memrealtime {S(s_u0 + 6, 2)}")
    a(f"v_lshrrev_b32 {T(0)}, 6, v0")
    a(f"v_and_b32 {V(v_l)}, 63, v0")
    if c["rot"]:
        a(f"s_add_u32 {S(s_t0)}, s2, {c['rot']}")
        a(f"s_and_b32 {S(s_t0)}, {S(s_t0)}, 7")
    else:
        a(f"s_and_b32 {S(s_t0)}, s2, 7")
    a(f"v_readfirstlane_b32 {S(s_w)}, {T(0)}")
    a(f"s_lshr_b32 {S(s_t1)}, s2, 3")
    a(f"s_and_b32 {S(s_t2)}, {S(s_t1)}, 3")
    a(f"s_lshl2_add_u32 {S(s_h)}, {S(s_t0)}, {S(s_t2)}")
    a(f"s_lshr_b32 {S(s_j)}, {S(s_t1)}, 2")
    a(f"s_and_b32 {S(s_b)}, {S(s_j)}, 1")
    a(f"s_lshr_b32 {S(s_t0)}, {S(s_j)}, 1")
    a(f"s_lshl_b32 {S(s_t1)}, {S(s_b)}, 5")
    a(f"s_add_u32 {S(s_t1)}, {S(s_t1)}, {S(s_h)}")
    a(f"s_lshl2_add_u32 {S(s_t1)}, {S(s_t1)}, {S(s_t0)}")
    a(f"s_mul_i32 {S(s_t1)}, {S(s_t1)}, 0x60000")
    a(f"s_mul_i32 {S(s_t2)}, {S(s_w)}, 3072")
    a(f"s_add_u32 {S(s_t1)}, {S(s_t1)}, {S(s_t2)}")
    a(f"v_lshrrev_b32 {T(1)}, 3, {V(v_l)}")
    a(f"v_and_b32 {T(2)}, 7, {V(v_l)}")
    a(f"v_lshlrev_b32 {T(3)}, 4, {T(2)}")
    a(f"v_mul_u32_u24 {V(v_ko)}, 384, {T(1)}")
    a(f"v_add_u32 {V(v_ko)}, {V(v_ko)}, {T(3)}")
    a(f"v_lshlrev_b32 {V(v_l16)}, 4, {V(v_l)}")
    a("s_waitcnt lgkmcnt(0)")
    if c["stamps"]:
        a(f"v_mov_b32 {V(v_st)}, 0")
        a(f"v_writelane_b32 {V(v_st)}, {S(s_u0 + 6)}, 0")
        a(f"s_getreg_b32 {S(s_u0 + 6)}, hwreg(HW_REG_XCC_ID)")
        a(f"s_or_b32 {S(s_u0 + 6)}, {S(s_u0 + 6)}, 0x80000000")
        a(f"v_writelane_b32 {V(v_st)}, {S(s_u0 + 6)}, 26")
        a(f"s_getreg_b32 {S(s_u0 + 6)}, hwreg(HW_REG_HW_ID)")
        a(f"s_or_b32 {S(s_u0 + 6)}, {S(s_u0 + 6)}, 0x80000000")
        a(f"v_writelane_b32 {V(v_st)}, {S(s_u0 + 6)}, 27")
    stamp(1)
    a(f"s_load_dword {S(s_ep)}, {S(p_ws, 2)}, 0x0")
    q = VmQ()
    a(f"s_cmp_lt_u32 {S(s_w)}, 5")
    a("s_cbranch_scc1 L_gemvld")
    a(f"s_cmp_eq_u32 {S(s_w)}, 7")
    a("s_cbranch_scc1 L_common")
    a("s_setprio 3")
    srd(R_X, p_x, None, 2560)
    a(f"s_sub_u32 {S(s_t2)}, {S(s_w)}, 5")
    a(f"s_mul_i32 {S(s_t2)}, {S(s_t2)}, 1280")
    a(f"v_lshlrev_b32 {T(4)}, 2, {V(v_l)}")
    for k in range(5):
        a(f"buffer_load_dword {V(v_w + k)}, {T(4)}, {S(R_X, 4)}, {S(s_t2)} offen offset:{256 * k}")
    a("s_branch L_common")
    a.label("L_gemvld")
    a("s_setprio 2")
    a(f"s_cmp_lt_u32 {S(s_w)}, 3")
    a(f"s_cselect_b32 {S(s_t2)}, 4, 1")
    a(f"s_mul_i32 {S(s_rs)}, {S(s_t2)}, 3072")
    a(f"s_mul_i32 {S(s_t2)}, {S(s_t2)}, 96")
    a(f"s_cselect_b32 {S(s_t3)}, 128, 0")
    a(f"s_cselect_b64 {S(s_msk, 2)}, -1, 0")
    a(f"s_cselect_b32 {S(s_t4)}, {S(p_wq)}, {S(p_gate)}")
    a(f"s_cselect_b32 {S(s_t5)}, {S(p_wq + 1)}, {S(p_gate + 1)}")
    a(f"s_cmp_eq_u32 {S(s_w)}, 4")
    a(f"s_cselect_b32 {S(s_t4)}, {S(p_up)}, {S(s_t4)}")
    a(f"s_cselect_b32 {S(s_t5)}, {S(p_up + 1)}, {S(s_t5)}")
    a(f"s_or_b32 {S(s_msk)}, {S(s_msk)}, 0x3f3f3f3f")
    a(f"s_or_b32 {S(s_msk + 1)}, {S(s_msk + 1)}, 0x3f3f3f3f")
    a(f"s_mul_i32 {S(s_t2)}, {S(s_t2)}, {S(s_h)}")
    a(f"s_mul_i32 {S(s_t3)}, {S(s_t3)}, {S(s_w)}")
    a(f"s_add_u32 {S(s_t2)}, {S(s_t2)}, {S(s_t3)}")
    a(f"s_mul_i32 {S(s_t3)}, {S(s_rs)}, {S(s_j)}")
    a(f"s_mul_i32 {S(s_t3)}, {S(s_t3)}, 80")
    a(f"s_add_u32 {S(s_t2)}, {S(s_t2)}, {S(s_t3)}")
    a(f"s_add_u32 {S(R_W)}, {S(s_t4)}, {S(s_t2)}")
    a(f"s_addc_u32 {S(R_W + 1)}, {S(s_t5)}, 0")
    a(f"s_mul_i32 {S(R_W + 2)}, {S(s_rs)}, 80")
    a(f"s_mov_b32 {S(R_W + 3)}, 0x20000")
    a(f"s_mul_i32 {S(s_t3)}, {S(s_rs)}, 10")
    a(f"v_mul_u32_u24 {T(4)}, {S(s_t3)}, {T(1)}")
    a(f"v_add_u32 {T(4)}, {T(4)}, {T(3)}")
    a(f"s_mov_b32 {S(s_t2)}, 0")
    a(f"s_mov_b64 exec, {S(s_msk, 2)}")
    for u in range(10):
        if "gw" not in skip:
            a(f"buffer_load_dwordx4 {V(v_w + 4 * u, 4)}, {T(4)}, {S(R_W, 4)}, {S(s_t2)} offen{wpol}")
        if u < 9:
            a(f"s_add_u32 {S(s_t2)}, {S(s_t2)}, {S(s_rs)}")
    a("s_mov_b64 exec, -1")
    a.label("L_common")
    srd(R_K, p_k, s_t1, 0x60000)
    srd(R_V, p_v, s_t1, 0x60000)
    srd(R_WS, p_ws, None, WS_END)
    n_after_role = 0
    if c["stamps"]:
        a(f"s_lshl_b32 {S(s_sto)}, s2, 3")
        a(f"s_add_u32 {S(s_sto)}, {S(s_sto)}, {S(s_w)}")
        a(f"s_lshl_b32 {S(s_sto)}, {S(s_sto)}, 7")
        a(f"s_add_u32 {S(s_sto)}, {S(s_sto)}, {WS_ST}")
    stamp(2)
    a(f"s_mov_b32 {S(s_sel0)}, 0x01000100")
    a(f"s_mov_b32 {S(s_sel1)}, 0x03020302")
    a(f"s_mov_b32 {S(s_scale)}, {f32(192 ** -0.5)}")
    a(f"s_mov_b32 {S(s_l2e)}, {f32(1.4426950408889634)}")
    a(f"s_mov_b32 {S(s_hi)}, 0xffff0000")
    a(f"s_mov_b32 {S(s_t0)}, 0xffff")
    a(f"v_and_b32 {T(5)}, 1, {V(v_l)}")
    a(f"v_lshlrev_b32 {T(5)}, 4, {T(5)}")
    a(f"v_lshlrev_b32 {T(5)}, {T(5)}, {S(s_t0)}")
    a(f"v_bfe_u32 {T(6)}, {V(v_l)}, 1, 2")
    a(f"v_lshlrev_b32 {T(6)}, {T(6)}, 1")
    for k in range(4):
        a(f"v_bfe_i32 {T(7)}, {T(6)}, {k}, 1")
        a(f"v_and_b32 {V(v_m + k)}, {T(7)}, {T(5)}")
    a(f"s_sub_u32 {S(s_t2)}, {S(s_w)}, 5")
    a(f"s_cmp_lt_u32 {S(s_t2)}, 2")
    a("s_cbranch_scc0 L_b1")
    X = v_w
    F = v_w + 8
    a(f"s_waitcnt vmcnt({n_after_role})")
    stamp(3)
    for k in range(5):
        a(f"v_lshlrev_b32 {V(F + 2 * k)}, 16, {V(X + k)}")
        a(f"v_and_b32 {V(F + 2 * k + 1)}, {S(s_hi)}, {V(X + k)}")

    def wave_total(reg, sdst):
        for m in ("quad_perm:[1,0,3,2]", "quad_perm:[2,3,0,1]", "row_half_mirror", "row_mirror"):
            a(f"v_add_f32_dpp {V(reg)}, {V(reg)}, {V(reg)} {m} row_mask:0xf bank_mask:0xf")
        a(f"v_add_f32_dpp {V(reg)}, {V(reg)}, {V(reg)} row_bcast:15 row_mask:0xa bank_mask:0xf")
        a(f"v_add_f32_dpp {V(reg)}, {V(reg)}, {V(reg)} row_bcast:31 row_mask:0xc bank_mask:0xf")
        a(f"v_readlane_b32 {S(sdst)}, {V(reg)}, 63")

    a(f"v_add_f32 {T(8)}, {V(F)}, {V(F + 1)}")
    for k in range(2, 10):
        a(f"v_add_f32 {T(8)}, {T(8)}, {V(F + k)}")
    wave_total(v_t + 8, s_t3)
    a(f"v_mov_b32 {T(9)}, {f32(1 / 640)}")
    a(f"v_mul_f32 {T(8)}, {S(s_t3)}, {T(9)}")
    a(f"v_sub_f32 {T(10)}, {V(F)}, {T(8)}")
    a(f"v_mul_f32 {T(11)}, {T(10)}, {T(10)}")
    for k in range(1, 10):
        a(f"v_sub_f32 {T(10)}, {V(F + k)}, {T(8)}")
        a(f"v_fmac_f32 {T(11)}, {T(10)}, {T(10)}")
    wave_total(v_t + 11, s_t3)
    a(f"v_mul_f32 {T(11)}, {S(s_t3)}, {T(9)}")
    a(f"v_cvt_pk_bf16_f32 {T(11)}, {T(11)}, {T(8)}")
    a(f"v_and_b32 {T(8)}, {S(s_hi)}, {T(11)}")
    a(f"v_lshlrev_b32 {T(11)}, 16, {T(11)}")
    a(f"v_add_f32 {T(11)}, {f32(1e-5)}, {T(11)}")
    a(f"v_cvt_pk_bf16_f32 {T(11)}, {T(11)}, {T(11)}")
    a(f"v_lshlrev_b32 {T(11)}, 16, {T(11)}")
    a(f"v_sqrt_f32 {T(11)}, {T(11)}")
    a(f"v_cvt_pk_bf16_f32 {T(11)}, {T(11)}, {T(11)}")
    a(f"v_lshlrev_b32 {T(11)}, 16, {T(11)}")
    a(f"v_rcp_f32 {T(12)}, {T(11)}")
    a(f"s_mul_i32 {S(s_t2)}, {S(s_t2)}, 1280")
    a(f"v_lshlrev_b32 {T(4)}, 2, {V(v_l)}")
    a(f"v_add_u32 {T(4)}, {S(s_t2)}, {T(4)}")
    for k in range(5):
        lo, hi = F + 2 * k, F + 2 * k + 1
        a(f"v_sub_f32 {V(lo)}, {V(lo)}, {T(8)}")
        a(f"v_sub_f32 {V(hi)}, {V(hi)}, {T(8)}")
        a(f"v_cvt_pk_bf16_f32 {T(9)}, {V(lo)}, {V(hi)}")
        a(f"v_lshlrev_b32 {V(lo)}, 16, {T(9)}")
        a(f"v_and_b32 {V(hi)}, {S(s_hi)}, {T(9)}")
        a(f"v_mul_f32 {T(9)}, {V(lo)}, {T(12)}")
        a(f"v_mul_f32 {T(10)}, {V(hi)}, {T(12)}")
        a(f"v_fma_f32 {V(lo)}, -{T(9)}, {T(11)}, {V(lo)}")
        a(f"v_fma_f32 {V(hi)}, -{T(10)}, {T(11)}, {V(hi)}")
        a(f"v_fmac_f32 {T(9)}, {V(lo)}, {T(12)}")
        a(f"v_fmac_f32 {T(10)}, {V(hi)}, {T(12)}")
        a(f"v_cvt_pk_bf16_f32 {T(9)}, {T(9)}, {T(10)}")
        a(f"ds_write_b32 {T(4)}, {T(9)} offset:{L_XN + 256 * k}")
    a.label("L_b1")
    stamp(4)
    a("s_waitcnt lgkmcnt(0)")
    a("s_barrier")
    stamp(5)
    a(f"s_mul_i32 {S(s_non)}, {S(s_ep)}, 0x9E3779B1")
    a(f"s_add_u32 {S(s_non)}, {S(s_non)}, 0x7F4A7C15")
    a(f"s_mov_b32 {S(s_spin)}, {c['spin']}")
    a(f"s_cmp_lt_u32 {S(s_w)}, 5")
    a("s_cbranch_scc0 L_pre")
    a(f"v_bfe_u32 {T(1)}, {V(v_l)}, 3, 1")
    a(f"v_lshrrev_b32 {T(2)}, 4, {V(v_l)}")
    a(f"v_mul_u32_u24 {T(1)}, 1280, {T(1)}")
    a(f"v_mul_u32_u24 {T(2)}, 40, {T(2)}")
    a(f"s_mul_i32 {S(s_t0)}, {S(s_j)}, 160")
    a(f"v_add3_u32 {T(1)}, {T(1)}, {T(2)}, {S(s_t0)}")
    for k in range(5):
        a(f"ds_read_b64 {V(v_xp + 2 * k, 2)}, {T(1)} offset:{L_XN + 8 * k}")
    a("s_waitcnt lgkmcnt(0)")
    D1, D2 = v_d, v_d + 4
    for u in range(10):
        sel = s_sel1 if (u & 1) else s_sel0
        a(f"v_perm_b32 {T(2)}, {V(v_xp + (u >> 1))}, {V(v_xp + (u >> 1))}, {S(sel)}")
        a(f"v_perm_b32 {T(3)}, {V(v_xp + 5 + (u >> 1))}, {V(v_xp + 5 + (u >> 1))}, {S(sel)}")
        aprep(v_a, v_t + 2)
        aprep(v_a + 4, v_t + 3)
        a(f"s_waitcnt vmcnt({9 - u + n_after_role })")
        c1 = "0" if u == 0 else V(D1, 4)
        c2 = "0" if u == 0 else V(D2, 4)
        a(f"v_mfma_f32_16x16x32_bf16 {V(D1, 4)}, {V(v_a, 4)}, {V(v_w + 4 * u, 4)}, {c1}")
        a(f"v_mfma_f32_16x16x32_bf16 {V(D2, 4)}, {V(v_a + 4, 4)}, {V(v_w + 4 * u, 4)}, {c2}")
    stamp(6)
    PUB = v_t + 4
    a(f"v_mov_b32 {V(PUB + 1)}, {S(s_non)}")
    a(f"v_mov_b32 {V(PUB + 3)}, {S(s_non)}")
    a(f"s_mul_i32 {S(s_t0)}, {S(s_h)}, 3")
    a(f"s_lshl_b32 {S(s_t1)}, {S(s_h)}, 1")
    a(f"s_add_u32 {S(s_t1)}, {S(s_t1)}, 93")
    a(f"s_cmp_lt_u32 {S(s_w)}, 3")
    a(f"s_cselect_b32 {S(s_t0)}, {S(s_t0)}, {S(s_t1)}")
    a(f"s_add_u32 {S(s_t0)}, {S(s_t0)}, {S(s_w)}")
    a(f"s_lshl_b32 {S(s_t0)}, {S(s_t0)}, 13")
    a(f"s_add_u32 {S(s_t0)}, {S(s_t0)}, {WS_H0}")
    a(f"s_lshl_b32 {S(s_t1)}, {S(s_j)}, 10")
    a(f"s_add_u32 {S(s_t1)}, {S(s_t1)}, {S(s_t0)}")
    a(f"v_add_f32_dpp {V(PUB)}, {V(D2)}, {V(D1)} row_ror:8 row_mask:0xf bank_mask:0x3")
    a(f"v_add_f32_dpp {V(PUB + 2)}, {V(D2 + 1)}, {V(D1 + 1)} row_ror:8 row_mask:0xf bank_mask:0x3")
    a(f"v_add_f32_dpp {V(PUB)}, {V(D1 + 2)}, {V(D2 + 2)} row_ror:8 row_mask:0xf bank_mask:0xc")
    a(f"v_add_f32_dpp {V(PUB + 2)}, {V(D1 + 3)}, {V(D2 + 3)} row_ror:8 row_mask:0xf bank_mask:0xc")
    a(f"buffer_store_dwordx4 {V(PUB, 4)}, {V(v_l16)}, {S(R_WS, 4)}, {S(s_t1)} offen sc1")
    stamp(7)
    a(f"s_cmp_lt_u32 {S(s_w)}, 3")
    if "gq" in skip:
        a("s_branch L_pre")
    a("s_cbranch_scc0 L_pre")
    a("s_setprio 3")
    G = v_w
    a(f"v_lshrrev_b32 {T(1)}, 5, {V(v_l)}")
    a(f"v_and_b32 {T(2)}, 31, {V(v_l)}")
    a(f"v_lshlrev_b32 {T(1)}, 10, {T(1)}")
    a(f"v_lshl_add_u32 {T(1)}, {T(2)}, 4, {T(1)}")
    a(f"s_lshl_b32 {S(s_t1)}, {S(s_b)}, 9")
    a(f"s_add_u32 {S(s_t0)}, {S(s_t0)}, {S(s_t1)}")
    a(f"s_add_u32 {S(s_t1)}, {S(s_t0)}, 4096")
    a.label("L_gq")
    for u in range(4):
        so = s_t0 if u < 2 else s_t1
        off = " offset:2048" if (u & 1) else ""
        a(f"buffer_load_dwordx4 {V(G + 4 * u, 4)}, {T(1)}, {S(R_WS, 4)}, {S(so)} offen{off} sc1")
    a("s_waitcnt vmcnt(0)")
    for u in range(4):
        a(f"v_cmpx_eq_u32 vcc, {S(s_non)}, {V(G + 4 * u + 1)}")
        a(f"v_cmpx_eq_u32 vcc, {S(s_non)}, {V(G + 4 * u + 3)}")
    a("s_cmp_eq_u64 exec, -1")
    a("s_mov_b64 exec, -1")
    spin_check("L_gq", "L_gq_ok")
    stamp(8)
    for k in (0, 2):
        a(f"v_add_f32 {V(G + k)}, {V(G + k)}, {V(G + 4 + k)}")
        a(f"v_add_f32 {V(G + 8 + k)}, {V(G + 8 + k)}, {V(G + 12 + k)}")
    for k in (0, 2):
        a(f"v_add_f32 {V(G + k)}, {V(G + k)}, {V(G + 8 + k)}")
    for k in (0, 2):
        a(f"v_mov_b32 {V(G + k + 1)}, {V(G + k)}")
    for k in (0, 2):
        a(f"v_permlane32_swap_b32 {V(G + k + 1)}, {V(G + k)}")
    for k in (0, 2):
        a(f"v_add_f32 {V(G + k)}, {V(G + k)}, {V(G + k + 1)}")
    a(f"v_cvt_pk_bf16_f32 {V(G)}, {V(G)}, {V(G + 2)}")
    a(f"v_and_b32 {T(1)}, 7, {V(v_l)}")
    a(f"v_lshlrev_b32 {T(1)}, 4, {T(1)}")
    a(f"v_bfe_u32 {T(2)}, {V(v_l)}, 4, 1")
    a(f"v_lshl_add_u32 {T(1)}, {T(2)}, 3, {T(1)}")
    a(f"v_bfe_u32 {T(2)}, {V(v_l)}, 3, 1")
    a(f"v_lshl_add_u32 {T(1)}, {T(2)}, 2, {T(1)}")
    a(f"s_lshl_b32 {S(s_t0)}, {S(s_w)}, 7")
    a(f"v_add_u32 {T(1)}, {S(s_t0)}, {T(1)}")
    a(f"ds_write_b32 {T(1)}, {V(G)} offset:{L_Q}")
    a.label("L_pre")
    a("s_setprio 0")
    if "late" in skip:
        a("s_waitcnt lgkmcnt(0)")
        a("s_barrier")

    def ring_loads():
        for g in range(D):
            kv_load(q, g, g % D)
    if not c["pwfirst"]:
        ring_loads()
    a(f"s_lshl_b32 {S(s_t0)}, {S(s_h)}, 1")
    a(f"s_add_u32 {S(s_t0)}, {S(s_t0)}, 96")
    a(f"s_lshl_b32 {S(s_t0)}, {S(s_t0)}, 3")
    a(f"s_add_u32 {S(s_t0)}, {S(s_t0)}, {S(s_w)}")
    a(f"s_lshl_b32 {S(s_t0)}, {S(s_t0)}, 10")
    a(f"s_add_u32 {S(s_g0)}, {S(s_t0)}, {WS_H0}")
    a(f"s_add_u32 {S(s_g0 + 1)}, {S(s_g0)}, 8192")
    a(f"s_mul_i32 {S(s_t0)}, {S(s_h)}, 192")
    a(f"s_mul_i32 {S(s_t1)}, {S(s_w)}, 24")
    a(f"s_add_u32 {S(s_t0)}, {S(s_t0)}, {S(s_t1)}")
    a(f"s_mul_i32 {S(s_t0)}, {S(s_t0)}, 1280")
    a(f"s_mul_i32 {S(s_t2)}, {S(s_j)}, 160")
    a(f"s_add_u32 {S(s_t0)}, {S(s_t0)}, {S(s_t2)}")
    srd(R_WO, p_wo, s_t0, 24 * 1280)
    a(f"s_mul_i32 {S(s_t0)}, {S(s_h)}, 48")
    a(f"s_lshl_b32 {S(s_t1)}, {S(s_w)}, 3")
    a(f"s_add_u32 {S(s_t0)}, {S(s_t0)}, {S(s_t1)}")
    a(f"s_mul_i32 {S(s_t0)}, {S(s_t0)}, 1280")
    a(f"s_add_u32 {S(s_t0)}, {S(s_t0)}, {S(s_t2)}")
    srd(R_DN, p_down, s_t0, 8 * 1280)
    a(f"v_lshrrev_b32 {T(2)}, 4, {V(v_l)}")
    a(f"v_and_b32 {T(3)}, 15, {V(v_l)}")
    a(f"v_lshlrev_b32 {T(3)}, 4, {T(3)}")
    a(f"v_mul_u32_u24 {T(4)}, 7680, {T(2)}")
    a(f"v_add_u32 {T(4)}, {T(4)}, {T(3)}")
    a(f"v_mul_u32_u24 {T(5)}, 2560, {T(2)}")
    a(f"v_add_u32 {T(5)}, {T(5)}, {T(3)}")
    a(f"s_mov_b32 {S(s_t0)}, 5120")
    a(f"s_mov_b32 {S(s_msk)}, 0x03ff03ff")
    a(f"s_mov_b32 {S(s_msk + 1)}, 0x03ff03ff")
    a(f"s_mov_b64 exec, {S(s_msk, 2)}")
    for u in range(6):
        so = "0" if u < 4 else S(s_t0)
        off = 1280 * (u % 4)
        o = f" offset:{off}" if off else ""
        if "pw" not in skip:
            a(f"buffer_load_dwordx4 {V(v_pw + 4 * u, 4)}, {T(4)}, {S(R_WO, 4)}, {so} offen{o}{wpol}")
    if "pw" not in skip:
        q.issue("pw", 6)
    a(f"s_cmp_lt_u32 {S(s_w)}, 6")
    a("s_cbranch_scc0 L_nodn")
    for u in range(2 if "pw" not in skip else 0):
        o = " offset:1280" if u else ""
        a(f"buffer_load_dwordx4 {V(v_pw + 24 + 4 * u, 4)}, {T(5)}, {S(R_DN, 4)}, 0 offen{o}{wpol}")
    a.label("L_nodn")
    a("s_mov_b64 exec, -1")
    srd(R_X, p_x, None, 2560)
    a(f"s_and_b32 {S(s_t0)}, {S(s_h)}, 1")
    a(f"s_mul_i32 {S(s_t0)}, {S(s_t0)}, 640")
    a(f"s_bfe_u32 {S(s_t1)}, {S(s_h)}, 0x30001")
    a(f"s_mul_i32 {S(s_t1)}, {S(s_t1)}, 10")
    a(f"s_add_u32 {S(s_t0)}, {S(s_t0)}, {S(s_t1)}")
    a(f"s_mul_i32 {S(s_t1)}, {S(s_j)}, 80")
    a(f"s_add_u32 {S(s_t0)}, {S(s_t0)}, {S(s_t1)}")
    a(f"s_lshl_b32 {S(s_u0)}, {S(s_t0)}, 1")
    a(f"v_and_b32 {T(1)}, 7, {V(v_l)}")
    a(f"v_min_u32 {T(1)}, 4, {T(1)}")
    a(f"v_lshlrev_b32 {T(1)}, 2, {T(1)}")
    a(f"buffer_load_dword {V(v_xr)}, {T(1)}, {S(R_X, 4)}, {S(s_u0)} offen")
    q.issue("xr", 1)
    if c["pwfirst"]:
        ring_loads()
    a("s_waitcnt lgkmcnt(0)")
    stamp(25)
    a("s_barrier")
    stamp(9)
    a(f"v_and_b32 {T(1)}, 7, {V(v_l)}")
    a(f"v_lshlrev_b32 {T(1)}, 4, {T(1)}")
    for t in range(3):
        a(f"ds_read_b128 {V(v_q + 4 * t, 4)}, {T(1)} offset:{L_Q + 128 * t}")
    a(f"v_mov_b32 {V(v_mx)}, 0xff7fffff")
    if c["prio"] == "step":
        a("s_setprio 3")
    a("s_waitcnt lgkmcnt(0)")
    for i in range(16):
        slot = i % D
        n = q.wait(f"g{i}")
        a(f"s_waitcnt vmcnt({n})")
        a0, a1, a2 = v_t, v_t + 1, v_t + 2
        for t, acc in enumerate((a0, a1, a2)):
            for k in range(4):
                src = "0" if k == 0 else V(acc)
                a(f"v_dot2_f32_bf16 {V(acc)}, {ring(slot, 4 * t + k)}, {V(v_q + 4 * t + k)}, {src}")
        kv_load(q, i + D, slot)
        if i == c["ffstep"]:
            a(f"buffer_load_dwordx4 {V(v_ff, 4)}, {V(v_l16)}, {S(R_WS, 4)}, {S(s_g0)} offen sc1")
            a(f"buffer_load_dwordx4 {V(v_ff + 4, 4)}, {V(v_l16)}, {S(R_WS, 4)}, {S(s_g0 + 1)} offen sc1")
            q.issue("ff", 2)
        if c["prio"] == "step" and i == 7:
            a("s_setprio 2")
        a(f"v_add_f32 {V(a0)}, {V(a0)}, {V(a1)}")
        a(f"v_add_f32 {V(a0)}, {V(a0)}, {V(a2)}")
        for m in ("quad_perm:[1,0,3,2]", "quad_perm:[2,3,0,1]", "row_half_mirror"):
            a(f"v_add_f32_dpp {V(a0)}, {V(a0)}, {V(a0)} {m} row_mask:0xf bank_mask:0xf")
        a(f"v_cvt_pk_bf16_f32 {V(a0)}, {V(a0)}, {V(a0)}")
        a(f"v_lshlrev_b32 {V(a0)}, 16, {V(a0)}")
        a(f"v_mul_f32 {V(a0)}, {S(s_scale)}, {V(a0)}")
        a(f"v_cvt_pk_bf16_f32 {V(a0)}, {V(a0)}, {V(a0)}")
        a(f"v_and_b32 {V(v_s + i)}, {S(s_hi)}, {V(a0)}")
        a(f"v_max_f32 {V(v_mx)}, {V(v_mx)}, {V(v_s + i)}")
        if i == 0:
            stamp(10)
        if i == 7:
            stamp(11)
    stamp(12)
    if c["prio"] == "step":
        a("s_setprio 1")
    allsum(v_mx, v_t, "max")
    a(f"v_mul_f32 {T(4)}, {S(s_l2e)}, {V(v_mx)}")
    a(f"v_sub_f32 {T(4)}, 0, {T(4)}")
    for i in range(16):
        a(f"v_fma_f32 {V(v_s + i)}, {V(v_s + i)}, {S(s_l2e)}, {T(4)}")
    for i in range(16):
        a(f"v_exp_f32 {V(v_s + i)}, {V(v_s + i)}")
    a(f"v_add_f32 {V(v_ls)}, {V(v_s)}, {V(v_s + 1)}")
    for i in range(2, 16):
        a(f"v_add_f32 {V(v_ls)}, {V(v_ls)}, {V(v_s + i)}")
    for i in range(16):
        a(f"v_cvt_pk_bf16_f32 {V(v_s + i)}, {V(v_s + i)}, {V(v_s + i)}")
    allsum(v_ls, v_t, "add")
    a(f"s_lshl_b32 {S(s_t0)}, {S(s_w)}, 2")
    a(f"v_mov_b32 {T(1)}, {S(s_t0)}")
    a("s_mov_b64 exec, 1")
    a(f"ds_write_b32 {T(1)}, {V(v_mx)} offset:{L_MX}")
    a(f"ds_write_b32 {T(1)}, {V(v_ls)} offset:{L_LS}")
    a("s_mov_b64 exec, -1")
    a(f"v_lshrrev_b32 {T(2)}, 5, {V(v_l)}")
    a(f"s_lshl_b32 {S(s_t0)}, {S(s_w)}, 1")
    a(f"v_add_u32 {T(2)}, {S(s_t0)}, {T(2)}")
    a(f"v_mul_u32_u24 {V(v_pa)}, 768, {T(2)}")
    a(f"v_and_b32 {T(2)}, 7, {V(v_l)}")
    a(f"v_lshl_add_u32 {V(v_pa)}, {T(2)}, 5, {V(v_pa)}")
    a(f"v_bfe_u32 {T(2)}, {V(v_l)}, 4, 1")
    a(f"v_lshl_add_u32 {V(v_pa)}, {T(2)}, 4, {V(v_pa)}")
    stamp(13)
    def ffn_check():
        assert "ff" not in q.q
        a.label("L_ffchk")
        a(f"s_mov_b32 {S(s_msk)}, 0x3f3f3f3f")
        a(f"s_mov_b32 {S(s_msk + 1)}, 0x3f3f3f3f")
        a(f"s_mov_b64 exec, {S(s_msk, 2)}")
        for k in (1, 3, 5, 7):
            a(f"v_cmpx_eq_u32 vcc, {S(s_non)}, {V(v_ff + k)}")
        a(f"s_cmp_eq_u64 exec, {S(s_msk, 2)}")
        a("s_mov_b64 exec, -1")
        a("s_cbranch_scc1 L_ffok")
        a(f"buffer_load_dwordx4 {V(v_ff, 4)}, {V(v_l16)}, {S(R_WS, 4)}, {S(s_g0)} offen sc1")
        a(f"buffer_load_dwordx4 {V(v_ff + 4, 4)}, {V(v_l16)}, {S(R_WS, 4)}, {S(s_g0 + 1)} offen sc1")
        a("s_waitcnt vmcnt(0)")
        a(f"s_sub_u32 {S(s_spin)}, {S(s_spin)}, 1")
        a(f"s_cmp_lg_u32 {S(s_spin)}, 0")
        a("s_cbranch_scc1 L_ffchk")
        a.label("L_ffok")
        a(f"v_lshlrev_b32 {T(1)}, 3, {V(v_l)}")
        a(f"s_lshl_b32 {S(s_t0)}, {S(s_w)}, 10")
        a(f"v_add_u32 {T(1)}, {S(s_t0)}, {T(1)}")
        a(f"v_mov_b32 {V(v_ff + 1)}, {V(v_ff + 2)}")
        a(f"v_mov_b32 {V(v_ff + 5)}, {V(v_ff + 6)}")
        a(f"ds_write_b64 {T(1)}, {V(v_ff, 2)} offset:{L_FP}")
        a(f"ds_write_b64 {T(1)}, {V(v_ff + 4, 2)} offset:{L_FP + 512}")

    for i in range(16):
        g = 16 + i
        slot = g % D
        A = v_a + 4 * (i & 1)
        aprep(A, v_s + i)
        n = q.wait(f"g{g}")
        a(f"s_waitcnt vmcnt({n})")
        for t in range(3):
            cacc = "0" if i == 0 else V(v_acc + 4 * t, 4)
            a(f"v_mfma_f32_16x16x32_bf16 {V(v_acc + 4 * t, 4)}, {V(A, 4)}, {ring(slot, 4 * t, 4)}, {cacc}")
        if g + D < 32:
            kv_load(q, g + D, slot)
        if i == 1:
            ffn_check()
        if i == 7:
            if c["prio"] == "step":
                a("s_setprio 0")
            stamp(14)
    stamp(15)
    a("s_mov_b32 exec_lo, 0x00ff00ff")
    a("s_mov_b32 exec_hi, 0xff00ff00")
    for t in range(3):
        a(f"ds_write_b128 {V(v_pa)}, {V(v_acc + 4 * t, 4)} offset:{L_P + 256 * t}")
    a("s_mov_b64 exec, -1")
    a(f"s_lshl_b32 {S(s_t0)}, {S(s_h)}, 3")
    a(f"s_lshl_b32 {S(s_g0)}, {S(s_t0)}, 11")
    a(f"s_add_u32 {S(s_g0)}, {S(s_g0)}, {WS_H2}")
    a(f"s_lshl_b32 {S(s_t1)}, {S(s_j)}, 11")
    a(f"s_add_u32 {S(s_t1)}, {S(s_t1)}, {S(s_g0)}")
    for k in range(1, 4):
        a(f"s_add_u32 {S(s_g0 + k)}, {S(s_g0)}, {4096 * k}")
    a("s_waitcnt lgkmcnt(0)")
    a("s_barrier")
    stamp(16)
    G = v_r
    PUB = v_t + 4
    a(f"s_cmp_lt_u32 {S(s_w)}, 3")
    a("s_cbranch_scc0 L_notg2")
    FW = G + 32
    a(f"v_mov_b32 {T(1)}, 0")
    a(f"ds_read_b128 {V(FW, 4)}, {T(1)} offset:{L_MX}")
    a(f"ds_read_b128 {V(FW + 4, 4)}, {T(1)} offset:{L_MX + 16}")
    a(f"s_cmp_eq_u32 {S(s_w)}, 2")
    a("s_cbranch_scc1 L_pubml")

    def wave_factors():
        a(f"v_max3_f32 {T(4)}, {V(FW)}, {V(FW + 1)}, {V(FW + 2)}")
        a(f"v_max3_f32 {T(5)}, {V(FW + 3)}, {V(FW + 4)}, {V(FW + 5)}")
        a(f"v_max3_f32 {T(4)}, {T(4)}, {V(FW + 6)}, {V(FW + 7)}")
        a(f"v_max_f32 {V(v_mx)}, {T(4)}, {T(5)}")
        for k in range(8):
            a(f"v_sub_f32 {V(FW + k)}, {V(FW + k)}, {V(v_mx)}")
        for k in range(8):
            a(f"v_mul_f32 {V(FW + k)}, {S(s_l2e)}, {V(FW + k)}")
        for k in range(8):
            a(f"v_exp_f32 {V(FW + k)}, {V(FW + k)}")
    a(f"v_lshlrev_b32 {T(1)}, 3, v0")
    for k in range(16):
        a(f"ds_read_b64 {V(G + 2 * k, 2)}, {T(1)} offset:{L_P + 768 * k}")
    a(f"s_waitcnt lgkmcnt(15)")
    wave_factors()
    a(f"v_lshlrev_b32 {T(2)}, 4, v0")
    a("s_waitcnt lgkmcnt(0)")
    for k in range(8):
        a(f"v_pk_add_f32 {V(G + 4 * k, 2)}, {V(G + 4 * k, 2)}, {V(G + 4 * k + 2, 2)}")
    for k in range(8):
        sel = k & 1
        fw = V(FW + (k & ~1), 2)
        mods = f"op_sel:[0,{sel}] op_sel_hi:[1,{sel}]"
        if k < 2:
            a(f"v_pk_mul_f32 {V(G + 4 * k, 2)}, {V(G + 4 * k, 2)}, {fw} {mods}")
        else:
            mods3 = f"op_sel:[0,{sel},0] op_sel_hi:[1,{sel},1]"
            a(f"v_pk_fma_f32 {V(G + 4 * (k & 1), 2)}, {V(G + 4 * k, 2)}, {fw}, {V(G + 4 * (k & 1), 2)} {mods3}")
    a(f"v_add_f32 {V(PUB)}, {V(G)}, {V(G + 4)}")
    a(f"v_add_f32 {V(PUB + 2)}, {V(G + 1)}, {V(G + 5)}")
    a(f"v_mov_b32 {V(PUB + 1)}, {S(s_non)}")
    a(f"v_mov_b32 {V(PUB + 3)}, {S(s_non)}")
    a(f"v_cmp_gt_u32 vcc, 96, v0")
    a(f"s_and_b64 exec, exec, vcc")
    a(f"buffer_store_dwordx4 {V(PUB, 4)}, {T(2)}, {S(R_WS, 4)}, {S(s_t1)} offen sc1")
    a("s_mov_b64 exec, -1")
    a("s_branch L_g2")
    a.label("L_pubml")
    a(f"v_mov_b32 {T(1)}, 0")
    a(f"ds_read_b128 {V(G, 4)}, {T(1)} offset:{L_LS}")
    a(f"ds_read_b128 {V(G + 4, 4)}, {T(1)} offset:{L_LS + 16}")
    a(f"s_waitcnt lgkmcnt(2)")
    wave_factors()
    a(f"v_mov_b32 {V(PUB + 1)}, {S(s_non)}")
    a(f"v_mov_b32 {V(PUB + 3)}, {S(s_non)}")
    a(f"v_mov_b32 {T(2)}, 1536")
    a("s_waitcnt lgkmcnt(0)")
    for k in range(4):
        a(f"v_pk_mul_f32 {V(G + 2 * k, 2)}, {V(G + 2 * k, 2)}, {V(FW + 2 * k, 2)}")
    a(f"v_pk_add_f32 {V(G, 2)}, {V(G, 2)}, {V(G + 2, 2)}")
    a(f"v_pk_add_f32 {V(G + 4, 2)}, {V(G + 4, 2)}, {V(G + 6, 2)}")
    a(f"v_pk_add_f32 {V(G, 2)}, {V(G, 2)}, {V(G + 4, 2)}")
    a(f"v_mov_b32 {V(PUB)}, {V(v_mx)}")
    a(f"v_add_f32 {V(PUB + 2)}, {V(G)}, {V(G + 1)}")
    a("s_mov_b64 exec, 1")
    a(f"buffer_store_dwordx4 {V(PUB, 4)}, {T(2)}, {S(R_WS, 4)}, {S(s_t1)} offen sc1")
    a("s_mov_b64 exec, -1")
    a.label("L_g2")
    stamp(17)
    a(f"v_cmp_le_u32 vcc, 96, v0")
    a(f"v_cndmask_b32 {T(1)}, 0, 1, vcc")
    a(f"v_mul_u32_u24 {T(2)}, 96, {T(1)}")
    a(f"v_sub_u32 {T(2)}, v0, {T(2)}")
    a(f"v_lshlrev_b32 {T(3)}, 11, {T(1)}")
    a(f"v_lshl_add_u32 {T(8)}, {T(2)}, 4, {T(3)}")
    a(f"v_add_u32 {T(9)}, 1536, {T(3)}")
    a(f"v_mul_u32_u24 {T(10)}, 480, {T(1)}")
    a(f"v_lshl_add_u32 {T(10)}, {T(2)}, 2, {T(10)}")
    a.label("L_g2l")
    for k in range(4):
        a(f"buffer_load_dwordx4 {V(G + 16 + 4 * k, 4)}, {T(9)}, {S(R_WS, 4)}, {S(s_g0 + k)} offen sc1")
        a(f"buffer_load_dwordx4 {V(G + 4 * k, 4)}, {T(8)}, {S(R_WS, 4)}, {S(s_g0 + k)} offen sc1")
    a("s_waitcnt vmcnt(0)")
    for k in range(8):
        a(f"v_cmpx_eq_u32 vcc, {S(s_non)}, {V(G + 4 * k + 1)}")
        a(f"v_cmpx_eq_u32 vcc, {S(s_non)}, {V(G + 4 * k + 3)}")
    a("s_cmp_eq_u64 exec, -1")
    a("s_mov_b64 exec, -1")
    spin_check("L_g2l", "L_g2ok")
    stamp(18)
    M = lambda k: V(G + 16 + 4 * k)
    Ls = lambda k: V(G + 16 + 4 * k + 2)
    a(f"v_max3_f32 {T(1)}, {M(0)}, {M(1)}, {M(2)}")
    a(f"v_max_f32 {T(1)}, {T(1)}, {M(3)}")
    for k in range(4):
        a(f"v_sub_f32 {M(k)}, {M(k)}, {T(1)}")
    for k in range(4):
        a(f"v_mul_f32 {M(k)}, {S(s_l2e)}, {M(k)}")
    for k in range(4):
        a(f"v_exp_f32 {M(k)}, {M(k)}")
    a(f"v_mul_f32 {T(1)}, {M(0)}, {Ls(0)}")
    a(f"v_mul_f32 {T(2)}, {M(0)}, {V(G)}")
    a(f"v_mul_f32 {T(3)}, {M(0)}, {V(G + 2)}")
    for k in range(1, 4):
        a(f"v_fmac_f32 {T(1)}, {M(k)}, {Ls(k)}")
        a(f"v_fmac_f32 {T(2)}, {M(k)}, {V(G + 4 * k)}")
        a(f"v_fmac_f32 {T(3)}, {M(k)}, {V(G + 4 * k + 2)}")
    a(f"v_rcp_f32 {T(1)}, {T(1)}")
    a(f"v_mul_f32 {T(2)}, {T(2)}, {T(1)}")
    a(f"v_mul_f32 {T(3)}, {T(3)}, {T(1)}")
    a(f"v_cvt_pk_bf16_f32 {T(2)}, {T(2)}, {T(3)}")
    a(f"ds_write_b32 {T(10)}, {T(2)} offset:{L_VEC}")
    a("s_branch L_b4")
    a.label("L_notg2")
    a(f"s_cmp_eq_u32 {S(s_w)}, 3")
    a("s_cbranch_scc0 L_b4")
    a(f"v_lshlrev_b32 {T(1)}, 3, {V(v_l)}")
    for k in range(8):
        a(f"ds_read_b64 {V(G + 2 * k, 2)}, {T(1)} offset:{L_FP + 1024 * k}")
        a(f"ds_read_b64 {V(G + 16 + 2 * k, 2)}, {T(1)} offset:{L_FP + 1024 * k + 512}")
    a("s_waitcnt lgkmcnt(0)")
    for base in (G, G + 16):
        for st in (4, 2, 1):
            for k in range(st):
                a(f"v_pk_add_f32 {V(base + 2 * k, 2)}, {V(base + 2 * k, 2)}, {V(base + 2 * (k + st), 2)}")
    a(f"v_cvt_pk_bf16_f32 {T(2)}, {V(G)}, {V(G + 1)}")
    a(f"v_cvt_pk_bf16_f32 {T(3)}, {V(G + 16)}, {V(G + 17)}")
    g0, g1, u0, u1 = G, G + 1, G + 2, G + 3
    a(f"v_lshlrev_b32 {V(g0)}, 16, {T(2)}")
    a(f"v_and_b32 {V(g1)}, {S(s_hi)}, {T(2)}")
    a(f"v_lshlrev_b32 {V(u0)}, 16, {T(3)}")
    a(f"v_and_b32 {V(u1)}, {S(s_hi)}, {T(3)}")
    kz = -2.0 * 0.7978845608028654 * 1.4426950408889634
    a(f"v_mov_b32 {T(4)}, {f32(0.044715)}")
    a(f"v_mov_b32 {T(5)}, {f32(kz)}")
    for gg, tt in ((g0, 6), (g1, 7)):
        a(f"v_mul_f32 {T(tt)}, {V(gg)}, {V(gg)}")
        a(f"v_mul_f32 {T(tt)}, {T(tt)}, {V(gg)}")
        a(f"v_fma_f32 {T(tt)}, {T(tt)}, {T(4)}, {V(gg)}")
        a(f"v_mul_f32 {T(tt)}, {T(tt)}, {T(5)}")
        a(f"v_exp_f32 {T(tt)}, {T(tt)}")
        a(f"v_add_f32 {T(tt)}, 1.0, {T(tt)}")
        a(f"v_rcp_f32 {T(tt)}, {T(tt)}")
        a(f"v_mul_f32 {T(tt)}, {T(tt)}, {V(gg)}")
    a(f"v_cvt_pk_bf16_f32 {T(2)}, {T(6)}, {T(7)}")
    a(f"v_lshlrev_b32 {V(g0)}, 16, {T(2)}")
    a(f"v_and_b32 {V(g1)}, {S(s_hi)}, {T(2)}")
    a(f"v_mul_f32 {V(g0)}, {V(g0)}, {V(u0)}")
    a(f"v_mul_f32 {V(g1)}, {V(g1)}, {V(u1)}")
    a(f"v_cvt_pk_bf16_f32 {T(2)}, {V(g0)}, {V(g1)}")
    a(f"v_lshrrev_b32 {T(3)}, 5, {V(v_l)}")
    a(f"v_mul_u32_u24 {T(3)}, 480, {T(3)}")
    a(f"v_and_b32 {T(4)}, 7, {V(v_l)}")
    a(f"v_lshl_add_u32 {T(3)}, {T(4)}, 4, {T(3)}")
    a(f"v_bfe_u32 {T(4)}, {V(v_l)}, 4, 1")
    a(f"v_lshl_add_u32 {T(3)}, {T(4)}, 3, {T(3)}")
    a(f"v_bfe_u32 {T(4)}, {V(v_l)}, 3, 1")
    a(f"v_lshl_add_u32 {T(3)}, {T(4)}, 2, {T(3)}")
    a("s_mov_b32 exec_lo, 0x3f3f3f3f")
    a("s_mov_b32 exec_hi, 0x3f3f3f3f")
    a(f"ds_write_b32 {T(3)}, {T(2)} offset:{L_VEC + 384}")
    a("s_mov_b64 exec, -1")
    a.label("L_b4")
    a(f"v_bfe_u32 {T(1)}, {V(v_l)}, 3, 1")
    a(f"v_mul_u32_u24 {T(1)}, 480, {T(1)}")
    a(f"v_lshrrev_b32 {T(2)}, 4, {V(v_l)}")
    a(f"v_mul_u32_u24 {T(3)}, 12, {T(2)}")
    a(f"s_mul_i32 {S(s_t0)}, {S(s_w)}, 48")
    a(f"v_add3_u32 {T(3)}, {T(3)}, {T(1)}, {S(s_t0)}")
    a(f"v_lshlrev_b32 {T(2)}, 2, {T(2)}")
    a(f"s_lshl_b32 {S(s_t0)}, {S(s_w)}, 4")
    a(f"v_add3_u32 {T(2)}, {T(2)}, {T(1)}, {S(s_t0)}")
    a("s_waitcnt lgkmcnt(0)")
    a("s_barrier")
    stamp(19)
    a(f"v_add_u32 {T(3)}, {L_VEC}, {T(3)}")
    a(f"v_add_u32 {T(2)}, {L_VEC + 384}, {T(2)}")
    a(f"ds_read2_b32 {V(v_t + 4, 2)}, {T(3)} offset0:0 offset1:1")
    a(f"ds_read_b32 {T(6)}, {T(3)} offset:8")
    a(f"ds_read_b32 {T(7)}, {T(2)}")
    a(f"v_lshrrev_b32 {T(8)}, 5, {V(v_l)}")
    a(f"v_mul_u32_u24 {T(8)}, 320, {T(8)}")
    a(f"v_and_b32 {T(9)}, 15, {V(v_l)}")
    a(f"v_lshl_add_u32 {T(8)}, {T(9)}, 5, {T(8)}")
    a(f"v_bfe_u32 {T(9)}, {V(v_l)}, 4, 1")
    a(f"v_lshl_add_u32 {T(8)}, {T(9)}, 4, {T(8)}")
    a(f"s_mul_i32 {S(s_t0)}, {S(s_w)}, 640")
    a(f"v_add_u32 {T(8)}, {S(s_t0)}, {T(8)}")
    a("s_waitcnt lgkmcnt(0)")
    Y = v_acc
    for u in range(6):
        sel = s_sel1 if (u & 1) else s_sel0
        A = v_a + 4 * (u & 1)
        a(f"v_perm_b32 {T(1)}, {V(v_t + 4 + (u >> 1))}, {V(v_t + 4 + (u >> 1))}, {S(sel)}")
        aprep(A, v_t + 1)
        cacc = "0" if u == 0 else V(Y, 4)
        a(f"v_mfma_f32_16x16x32_bf16 {V(Y, 4)}, {V(A, 4)}, {V(v_pw + 4 * u, 4)}, {cacc}")
    a(f"s_cmp_lt_u32 {S(s_w)}, 6")
    a("s_cbranch_scc0 L_nodn2")
    for u in range(2):
        sel = s_sel1 if (u & 1) else s_sel0
        A = v_a + 4 * (u & 1)
        a(f"v_perm_b32 {T(1)}, {T(7)}, {T(7)}, {S(sel)}")
        aprep(A, v_t + 1)
        a(f"v_mfma_f32_16x16x32_bf16 {V(Y, 4)}, {V(A, 4)}, {V(v_pw + 24 + 4 * u, 4)}, {V(Y, 4)}")
    a.label("L_nodn2")
    a("s_nop 7")
    a("s_mov_b32 exec_lo, 0x03ff03ff")
    a("s_mov_b32 exec_hi, 0x03ff03ff")
    a(f"ds_write_b128 {T(8)}, {V(Y, 4)} offset:{L_Y}")
    a("s_mov_b64 exec, -1")
    a(f"s_lshl_b32 {S(s_t0)}, {S(s_j)}, 5")
    a(f"s_mul_i32 {S(s_g0)}, {S(s_t0)}, 1280")
    a(f"s_add_u32 {S(s_g0)}, {S(s_g0)}, {WS_H3}")
    a(f"s_mul_i32 {S(s_t1)}, {S(s_h)}, 1280")
    a(f"s_add_u32 {S(s_t1)}, {S(s_t1)}, {S(s_g0)}")
    a("s_waitcnt lgkmcnt(0)")
    a("s_barrier")
    stamp(20)
    a(f"s_cmp_lt_u32 {S(s_w)}, 2")
    a("s_cbranch_scc0 L_fin")
    a(f"v_lshlrev_b32 {T(1)}, 3, v0")
    for k in range(8):
        a(f"ds_read_b64 {V(G + 2 * k, 2)}, {T(1)} offset:{L_Y + 640 * k}")
    a(f"v_mov_b32 {V(PUB + 1)}, {S(s_non)}")
    a(f"v_mov_b32 {V(PUB + 3)}, {S(s_non)}")
    a(f"v_lshlrev_b32 {T(2)}, 4, v0")
    a("s_waitcnt lgkmcnt(0)")
    for st in (4, 2):
        for k in range(st):
            a(f"v_pk_add_f32 {V(G + 2 * k, 2)}, {V(G + 2 * k, 2)}, {V(G + 2 * (k + st), 2)}")
    a(f"v_add_f32 {V(PUB)}, {V(G)}, {V(G + 2)}")
    a(f"v_add_f32 {V(PUB + 2)}, {V(G + 1)}, {V(G + 3)}")
    a(f"v_cmp_gt_u32 vcc, 80, v0")
    a(f"s_and_b64 exec, exec, vcc")
    a(f"buffer_store_dwordx4 {V(PUB, 4)}, {T(2)}, {S(R_WS, 4)}, {S(s_t1)} offen sc1")
    stamp(21)
    finish()
    a.label("L_fin")
    a(f"s_cmp_eq_u32 {S(s_w)}, 2")
    a("s_cbranch_scc0 L_end")
    a(f"s_cmp_lt_u32 {S(s_h)}, 16")
    a("s_cbranch_scc0 L_end")
    a(f"s_and_b32 {S(s_t0)}, {S(s_h)}, 1")
    a(f"s_mul_i32 {S(s_t0)}, {S(s_t0)}, 640")
    a(f"s_lshr_b32 {S(s_t1)}, {S(s_h)}, 1")
    a(f"s_mul_i32 {S(s_t1)}, {S(s_t1)}, 80")
    a(f"s_add_u32 {S(s_t0)}, {S(s_t0)}, {S(s_t1)}")
    a(f"s_add_u32 {S(s_g0)}, {S(s_g0)}, {S(s_t0)}")
    for k in range(1, 4):
        a(f"s_add_u32 {S(s_g0 + k)}, {S(s_g0)}, {10240 * k}")
    a(f"v_lshrrev_b32 {T(1)}, 3, {V(v_l)}")
    a(f"v_mul_u32_u24 {T(1)}, 1280, {T(1)}")
    a(f"v_and_b32 {T(2)}, 7, {V(v_l)}")
    a(f"v_lshl_add_u32 {T(1)}, {T(2)}, 4, {T(1)}")
    a(f"s_mov_b32 {S(s_msk)}, 0x1f1f1f1f")
    a(f"s_mov_b32 {S(s_msk + 1)}, 0x1f1f1f1f")
    a.label("L_g3l")
    a(f"s_mov_b64 exec, {S(s_msk, 2)}")
    for k in range(4):
        a(f"buffer_load_dwordx4 {V(G + 4 * k, 4)}, {T(1)}, {S(R_WS, 4)}, {S(s_g0 + k)} offen sc1")
    a("s_waitcnt vmcnt(0)")
    for k in range(4):
        a(f"v_cmpx_eq_u32 vcc, {S(s_non)}, {V(G + 4 * k + 1)}")
        a(f"v_cmpx_eq_u32 vcc, {S(s_non)}, {V(G + 4 * k + 3)}")
    a(f"s_cmp_eq_u64 exec, {S(s_msk, 2)}")
    a("s_mov_b64 exec, -1")
    spin_check("L_g3l", "L_g3ok")
    stamp(22)
    for k in (0, 2):
        a(f"v_add_f32 {V(G + k)}, {V(G + k)}, {V(G + 4 + k)}")
        a(f"v_add_f32 {V(G + 8 + k)}, {V(G + 8 + k)}, {V(G + 12 + k)}")
    for k in (0, 2):
        a(f"v_add_f32 {V(G + k)}, {V(G + k)}, {V(G + 8 + k)}")
    allsum(G, v_t + 3, "add")
    allsum(G + 2, v_t + 4, "add")
    a(f"v_lshlrev_b32 {T(3)}, 16, {V(v_xr)}")
    a(f"v_and_b32 {T(4)}, {S(s_hi)}, {V(v_xr)}")
    a(f"v_add_f32 {T(3)}, {T(3)}, {V(G)}")
    a(f"v_add_f32 {T(4)}, {T(4)}, {V(G + 2)}")
    a(f"v_cvt_pk_bf16_f32 {T(3)}, {T(3)}, {T(4)}")
    srd(R_OUT, p_out, None, 2560)
    a(f"v_lshlrev_b32 {T(2)}, 2, {T(2)}")
    a("s_mov_b64 exec, 0x1f")
    a(f"buffer_store_dword {T(3)}, {T(2)}, {S(R_OUT, 4)}, {S(s_u0)} offen")
    a("s_cmp_eq_u32 s2, 0")
    a("s_cbranch_scc0 L_fin2")
    a("s_mov_b64 exec, 1")
    a(f"v_mov_b32 {T(5)}, {S(s_non)}")
    a(f"v_mov_b32 {T(6)}, 0")
    a(f"buffer_store_dword {T(5)}, {T(6)}, {S(R_WS, 4)}, 0 offen sc1")
    a.label("L_fin2")
    a("s_mov_b64 exec, -1")
    stamp(23)
    a.label("L_end")
    if c["stamps"]:
        a("s_mov_b64 exec, -1")
        stamp(24)
        a(f"v_lshlrev_b32 {T(1)}, 2, {V(v_l)}")
        a("s_mov_b32 exec_hi, 0")
        a(f"buffer_store_dword {V(v_st)}, {T(1)}, {S(R_WS, 4)}, {S(s_sto)} offen")
    a.label("L_exit")
    a("s_endpgm")

    body = a.finish()
    for p in a.problems:
        print("HAZARD-PROBLEM:", p, file=sys.stderr)
    hdr = open("parallel_sum__mha_block_cached__geglu_ffn__decode.s.ref").read().split("\n")
    top = [l for l in hdr if l.startswith(";") and "@launch" not in l and not l.startswith("; Override") and not l.startswith("; grid=")]
    lead = []
    for l in hdr:
        if not l.startswith(";"):
            break
        if "@launch" in l:
            continue
        lead.append(l)
    out = lead + [f"; @launch grid=(256,1,1) block=(512,1,1) lds={LDS_BYTES}"]
    out += ['.amdgcn_target "amdgcn-amd-amdhsa--gfx950"', ".text", f".globl {NAME}", ".p2align 8", f".type {NAME},@function"]
    out += [(l if l.endswith(":") else "    " + l) for l in body]
    out += ['.section .rodata,"a"', ".p2align 6", f".amdhsa_kernel {NAME}",
            f"  .amdhsa_next_free_vgpr {NV}", "  .amdhsa_next_free_sgpr 102", f"  .amdhsa_accum_offset {NV}",
            "  .amdhsa_group_segment_fixed_size 0", "  .amdhsa_kernarg_size 96", "  .amdhsa_user_sgpr_count 2",
            "  .amdhsa_user_sgpr_kernarg_segment_ptr 1", "  .amdhsa_system_sgpr_workgroup_id_x 1", ".end_amdhsa_kernel", ""]
    return "\n".join(out), a


if __name__ == "__main__":
    cfg = {}
    outp = "parallel_sum__mha_block_cached__geglu_ffn__decode.s"
    for arg in sys.argv[1:]:
        k, v = arg.split("=", 1)
        if k == "out":
            outp = v
        else:
            try:
                cfg[k] = int(v)
            except ValueError:
                cfg[k] = v
    txt, a = gen(cfg)
    open(outp, "w").write(txt)
    print(f"wrote {outp}: {len(txt.splitlines())} lines, {a.nfix} nops inserted")
```

```python
import sys, os, struct
sys.path.insert(0, os.path.dirname(os.path.abspath(__file__)))
from asmlib import Asm, VmQ, V, S

NAME = "parallel_sum__mha_block_cached__geglu_ffn__decode_kernel"

DEFAULT = dict(
    D=6,
    D0=0,
    kpol="nt",
    wpol="",
    stamps=0,
    spin=400000,
    prio="",
    ffstep=8,
    pwfirst=0,
    rot=0,
    dbg=0,
    skip="",
)

WS_EP = 0
WS_H0 = 4096
WS_H2 = WS_H0 + 160 * 8 * 1024
WS_H3 = WS_H2 + 256 * 2048
WS_ST = WS_H3 + 256 * 1280
WS_END = WS_ST + 256 * 8 * 16 * 8

L_XN = 0
L_Q = 2560
L_MX = 3072
L_LS = 3104
L_FP = 4096
L_P = 12288
L_VEC = 24576
L_Y = 25600
LDS_BYTES = 32768

s_w, s_h, s_j, s_b, s_non = 3, 4, 5, 6, 7
s_t0, s_t1, s_t2, s_t3, s_t4, s_t5 = 8, 9, 10, 11, 12, 13
s_ep, s_spin = 14, 15
p_x, p_k, p_v, p_wq, p_wo, p_bx, p_gate, p_up = 16, 18, 20, 22, 24, 26, 28, 30
p_down, p_out, p_dbg, p_ws = 32, 34, 36, 38
R_K, R_V, R_W, R_WO, R_DN, R_WS, R_X, R_OUT = 40, 44, 48, 52, 56, 60, 64, 68
s_ko = 72
s_sel0, s_sel1 = 73, 74
s_scale, s_l2e = 75, 76
s_rs = 77
s_g0 = 78
s_msk = 82
s_u0 = 84
s_tm = 92
s_sto = 94
s_hi = 95

v_tid = 0
v_l = 1
v_ko = 2
v_m = 3
v_l16 = 7
v_t = 8
v_mx = 24
v_ls = 25
v_pa = 26
v_xr = 27
v_a = 28
v_q = 36
v_s = 48
v_acc = 64
v_ff = 76
v_pw = 84
v_w = 116
v_xp = 156
v_d = 166
v_st = 175
v_r = 176
NV = 256


def f32(x):
    return "0x%08x" % struct.unpack("<I", struct.pack("<f", x))[0]


def gen(cfg):
    c = dict(DEFAULT)
    c.update(cfg)
    skip = set(str(c["skip"]).split("+"))
    D, D0 = c["D"], c["D0"]
    kpol = (" " + c["kpol"]) if c["kpol"] else ""
    wpol = (" " + c["wpol"]) if c["wpol"] else ""
    a = Asm()
    ring = lambda slot, k=0, n=1: V(v_r + 12 * slot + k, n)
    assert v_r + 12 * D <= NV

    def stamp(idx):
        if not c["stamps"]:
            return
        a(f"s_memrealtime {S(s_tm, 2)}")
        a("s_waitcnt lgkmcnt(0)")
        a(f"v_writelane_b32 {V(v_st)}, {S(s_tm)}, {idx}")

    def finish(lbl=None):
        if c["stamps"]:
            a("s_branch L_end")
        else:
            a("s_endpgm")

    def srd(r, ptr, off_sgpr, nrec):
        if off_sgpr is None:
            a(f"s_mov_b32 {S(r)}, {S(ptr)}")
            a(f"s_mov_b32 {S(r + 1)}, {S(ptr + 1)}")
        else:
            a(f"s_add_u32 {S(r)}, {S(ptr)}, {S(off_sgpr)}")
            a(f"s_addc_u32 {S(r + 1)}, {S(ptr + 1)}, 0")
        a(f"s_mov_b32 {S(r + 2)}, {nrec}")
        a(f"s_mov_b32 {S(r + 3)}, 0x20000")

    def kv_load(q, g, slot):
        r = R_K if g < 16 else R_V
        gi = g % 16
        a(f"s_mov_b32 {S(s_ko)}, {gi * 24576}")
        for t in range(3):
            off = f" offset:{128 * t}" if t else ""
            a(f"buffer_load_dwordx4 {ring(slot, 4 * t, 4)}, {V(v_ko)}, {S(r, 4)}, {S(s_ko)} offen{off}{kpol}")
        q.issue(f"g{g}", 3)

    def spin_check(lbl_retry, lbl_go):
        a(f"s_cbranch_scc1 {lbl_go}")
        a(f"s_sub_u32 {S(s_spin)}, {S(s_spin)}, 1")
        a(f"s_cmp_lg_u32 {S(s_spin)}, 0")
        a(f"s_cbranch_scc1 {lbl_retry}")
        a.label(lbl_go)

    def allsum(reg, tmp, op="add"):
        o = f"v_{op}_f32"
        a(f"{o}_dpp {V(reg)}, {V(reg)}, {V(reg)} row_ror:8 row_mask:0xf bank_mask:0xf")
        a(f"v_mov_b32 {V(tmp)}, {V(reg)}")
        a(f"v_permlane16_swap_b32 {V(tmp)}, {V(reg)}")
        a(f"{o} {V(reg)}, {V(reg)}, {V(tmp)}")
        a(f"v_mov_b32 {V(tmp)}, {V(reg)}")
        a(f"v_permlane32_swap_b32 {V(tmp)}, {V(reg)}")
        a(f"{o} {V(reg)}, {V(reg)}, {V(tmp)}")

    def aprep(dst, dup):
        for k in range(4):
            a(f"v_and_b32 {V(dst + k)}, {V(dup)}, {V(v_m + k)}")

    T = lambda k: V(v_t + k)

    a.label(NAME)
    a(f"s_cmpk_ge_u32 s2, 0x100")
    a("s_cbranch_scc1 L_exit")
    a(f"s_load_dwordx16 {S(16, 16)}, s[0:1], 0x0")
    a(f"s_load_dwordx8 {S(32, 8)}, s[0:1], 0x40")
    if c["stamps"]:
        a(f"s_memrealtime {S(s_u0 + 6, 2)}")
    a(f"v_lshrrev_b32 {T(0)}, 6, v0")
    a(f"v_and_b32 {V(v_l)}, 63, v0")
    if c["rot"]:
        a(f"s_add_u32 {S(s_t0)}, s2, {c['rot']}")
        a(f"s_and_b32 {S(s_t0)}, {S(s_t0)}, 7")
    else:
        a(f"s_and_b32 {S(s_t0)}, s2, 7")
    a(f"v_readfirstlane_b32 {S(s_w)}, {T(0)}")
    a(f"s_lshr_b32 {S(s_t1)}, s2, 3")
    a(f"s_and_b32 {S(s_t2)}, {S(s_t1)}, 3")
    a(f"s_lshl2_add_u32 {S(s_h)}, {S(s_t0)}, {S(s_t2)}")
    a(f"s_lshr_b32 {S(s_j)}, {S(s_t1)}, 2")
    a(f"s_and_b32 {S(s_b)}, {S(s_j)}, 1")
    a(f"s_lshr_b32 {S(s_t0)}, {S(s_j)}, 1")
    a(f"s_lshl_b32 {S(s_t1)}, {S(s_b)}, 5")
    a(f"s_add_u32 {S(s_t1)}, {S(s_t1)}, {S(s_h)}")
    a(f"s_lshl2_add_u32 {S(s_t1)}, {S(s_t1)}, {S(s_t0)}")
    a(f"s_mul_i32 {S(s_t1)}, {S(s_t1)}, 0x60000")
    a(f"s_mul_i32 {S(s_t2)}, {S(s_w)}, 3072")
    a(f"s_add_u32 {S(s_t1)}, {S(s_t1)}, {S(s_t2)}")
    a(f"v_lshrrev_b32 {T(1)}, 3, {V(v_l)}")
    a(f"v_and_b32 {T(2)}, 7, {V(v_l)}")
    a(f"v_lshlrev_b32 {T(3)}, 4, {T(2)}")
    a(f"v_mul_u32_u24 {V(v_ko)}, 384, {T(1)}")
    a(f"v_add_u32 {V(v_ko)}, {V(v_ko)}, {T(3)}")
    a(f"v_lshlrev_b32 {V(v_l16)}, 4, {V(v_l)}")
    a("s_waitcnt lgkmcnt(0)")
    if c["stamps"]:
        a(f"v_mov_b32 {V(v_st)}, 0")
        a(f"v_writelane_b32 {V(v_st)}, {S(s_u0 + 6)}, 0")
        a(f"s_getreg_b32 {S(s_u0 + 6)}, hwreg(HW_REG_XCC_ID)")
        a(f"s_or_b32 {S(s_u0 + 6)}, {S(s_u0 + 6)}, 0x80000000")
        a(f"v_writelane_b32 {V(v_st)}, {S(s_u0 + 6)}, 26")
        a(f"s_getreg_b32 {S(s_u0 + 6)}, hwreg(HW_REG_HW_ID)")
        a(f"s_or_b32 {S(s_u0 + 6)}, {S(s_u0 + 6)}, 0x80000000")
        a(f"v_writelane_b32 {V(v_st)}, {S(s_u0 + 6)}, 27")
    stamp(1)
    a(f"s_load_dword {S(s_ep)}, {S(p_ws, 2)}, 0x0")
    q = VmQ()
    a(f"s_cmp_lt_u32 {S(s_w)}, 5")
    a("s_cbranch_scc1 L_gemvld")
    a(f"s_cmp_eq_u32 {S(s_w)}, 7")
    a("s_cbranch_scc1 L_common")
    a("s_setprio 3")
    srd(R_X, p_x, None, 2560)
    a(f"s_sub_u32 {S(s_t2)}, {S(s_w)}, 5")
    a(f"s_mul_i32 {S(s_t2)}, {S(s_t2)}, 1280")
    a(f"v_lshlrev_b32 {T(4)}, 2, {V(v_l)}")
    for k in range(5):
        a(f"buffer_load_dword {V(v_w + k)}, {T(4)}, {S(R_X, 4)}, {S(s_t2)} offen offset:{256 * k}")
    a("s_branch L_common")
    a.label("L_gemvld")
    a("s_setprio 2")
    a(f"s_cmp_lt_u32 {S(s_w)}, 3")
    a(f"s_cselect_b32 {S(s_t2)}, 4, 1")
    a(f"s_mul_i32 {S(s_rs)}, {S(s_t2)}, 3072")
    a(f"s_mul_i32 {S(s_t2)}, {S(s_t2)}, 96")
    a(f"s_cselect_b32 {S(s_t3)}, 128, 0")
    a(f"s_cselect_b64 {S(s_msk, 2)}, -1, 0")
    a(f"s_cselect_b32 {S(s_t4)}, {S(p_wq)}, {S(p_gate)}")
    a(f"s_cselect_b32 {S(s_t5)}, {S(p_wq + 1)}, {S(p_gate + 1)}")
    a(f"s_cmp_eq_u32 {S(s_w)}, 4")
    a(f"s_cselect_b32 {S(s_t4)}, {S(p_up)}, {S(s_t4)}")
    a(f"s_cselect_b32 {S(s_t5)}, {S(p_up + 1)}, {S(s_t5)}")
    a(f"s_or_b32 {S(s_msk)}, {S(s_msk)}, 0x3f3f3f3f")
    a(f"s_or_b32 {S(s_msk + 1)}, {S(s_msk + 1)}, 0x3f3f3f3f")
    a(f"s_mul_i32 {S(s_t2)}, {S(s_t2)}, {S(s_h)}")
    a(f"s_mul_i32 {S(s_t3)}, {S(s_t3)}, {S(s_w)}")
    a(f"s_add_u32 {S(s_t2)}, {S(s_t2)}, {S(s_t3)}")
    a(f"s_mul_i32 {S(s_t3)}, {S(s_rs)}, {S(s_j)}")
    a(f"s_mul_i32 {S(s_t3)}, {S(s_t3)}, 80")
    a(f"s_add_u32 {S(s_t2)}, {S(s_t2)}, {S(s_t3)}")
    a(f"s_add_u32 {S(R_W)}, {S(s_t4)}, {S(s_t2)}")
    a(f"s_addc_u32 {S(R_W + 1)}, {S(s_t5)}, 0")
    a(f"s_mul_i32 {S(R_W + 2)}, {S(s_rs)}, 80")
    a(f"s_mov_b32 {S(R_W + 3)}, 0x20000")
    a(f"s_mul_i32 {S(s_t3)}, {S(s_rs)}, 10")
    a(f"v_mul_u32_u24 {T(4)}, {S(s_t3)}, {T(1)}")
    a(f"v_add_u32 {T(4)}, {T(4)}, {T(3)}")
    a(f"s_mov_b32 {S(s_t2)}, 0")
    a(f"s_mov_b64 exec, {S(s_msk, 2)}")
    for u in range(10):
        if "gw" not in skip:
            a(f"buffer_load_dwordx4 {V(v_w + 4 * u, 4)}, {T(4)}, {S(R_W, 4)}, {S(s_t2)} offen{wpol}")
        if u < 9:
            a(f"s_add_u32 {S(s_t2)}, {S(s_t2)}, {S(s_rs)}")
    a("s_mov_b64 exec, -1")
    a.label("L_common")
    srd(R_K, p_k, s_t1, 0x60000)
    srd(R_V, p_v, s_t1, 0x60000)
    srd(R_WS, p_ws, None, WS_END)
    n_after_role = 0
    if c["stamps"]:
        a(f"s_lshl_b32 {S(s_sto)}, s2, 3")
        a(f"s_add_u32 {S(s_sto)}, {S(s_sto)}, {S(s_w)}")
        a(f"s_lshl_b32 {S(s_sto)}, {S(s_sto)}, 7")
        a(f"s_add_u32 {S(s_sto)}, {S(s_sto)}, {WS_ST}")
    stamp(2)
    a(f"s_mov_b32 {S(s_sel0)}, 0x01000100")
    a(f"s_mov_b32 {S(s_sel1)}, 0x03020302")
    a(f"s_mov_b32 {S(s_scale)}, {f32(192 ** -0.5)}")
    a(f"s_mov_b32 {S(s_l2e)}, {f32(1.4426950408889634)}")
    a(f"s_mov_b32 {S(s_hi)}, 0xffff0000")
    a(f"s_mov_b32 {S(s_t0)}, 0xffff")
    a(f"v_and_b32 {T(5)}, 1, {V(v_l)}")
    a(f"v_lshlrev_b32 {T(5)}, 4, {T(5)}")
    a(f"v_lshlrev_b32 {T(5)}, {T(5)}, {S(s_t0)}")
    a(f"v_bfe_u32 {T(6)}, {V(v_l)}, 1, 2")
    a(f"v_lshlrev_b32 {T(6)}, {T(6)}, 1")
    for k in range(4):
        a(f"v_bfe_i32 {T(7)}, {T(6)}, {k}, 1")
        a(f"v_and_b32 {V(v_m + k)}, {T(7)}, {T(5)}")
    a(f"s_sub_u32 {S(s_t2)}, {S(s_w)}, 5")
    a(f"s_cmp_lt_u32 {S(s_t2)}, 2")
    a("s_cbranch_scc0 L_b1")
    X = v_w
    F = v_w + 8
    a(f"s_waitcnt vmcnt({n_after_role})")
    stamp(3)
    for k in range(5):
        a(f"v_lshlrev_b32 {V(F + 2 * k)}, 16, {V(X + k)}")
        a(f"v_and_b32 {V(F + 2 * k + 1)}, {S(s_hi)}, {V(X + k)}")

    def wave_total(reg, sdst):
        for m in ("quad_perm:[1,0,3,2]", "quad_perm:[2,3,0,1]", "row_half_mirror", "row_mirror"):
            a(f"v_add_f32_dpp {V(reg)}, {V(reg)}, {V(reg)} {m} row_mask:0xf bank_mask:0xf")
        a(f"v_add_f32_dpp {V(reg)}, {V(reg)}, {V(reg)} row_bcast:15 row_mask:0xa bank_mask:0xf")
        a(f"v_add_f32_dpp {V(reg)}, {V(reg)}, {V(reg)} row_bcast:31 row_mask:0xc bank_mask:0xf")
        a(f"v_readlane_b32 {S(sdst)}, {V(reg)}, 63")

    a(f"v_add_f32 {T(8)}, {V(F)}, {V(F + 1)}")
    for k in range(2, 10):
        a(f"v_add_f32 {T(8)}, {T(8)}, {V(F + k)}")
    wave_total(v_t + 8, s_t3)
    a(f"v_mov_b32 {T(9)}, {f32(1 / 640)}")
    a(f"v_mul_f32 {T(8)}, {S(s_t3)}, {T(9)}")
    a(f"v_sub_f32 {T(10)}, {V(F)}, {T(8)}")
    a(f"v_mul_f32 {T(11)}, {T(10)}, {T(10)}")
    for k in range(1, 10):
        a(f"v_sub_f32 {T(10)}, {V(F + k)}, {T(8)}")
        a(f"v_fmac_f32 {T(11)}, {T(10)}, {T(10)}")
    wave_total(v_t + 11, s_t3)
    a(f"v_mul_f32 {T(11)}, {S(s_t3)}, {T(9)}")
    a(f"v_cvt_pk_bf16_f32 {T(11)}, {T(11)}, {T(8)}")
    a(f"v_and_b32 {T(8)}, {S(s_hi)}, {T(11)}")
    a(f"v_lshlrev_b32 {T(11)}, 16, {T(11)}")
    a(f"v_add_f32 {T(11)}, {f32(1e-5)}, {T(11)}")
    a(f"v_cvt_pk_bf16_f32 {T(11)}, {T(11)}, {T(11)}")
    a(f"v_lshlrev_b32 {T(11)}, 16, {T(11)}")
    a(f"v_sqrt_f32 {T(11)}, {T(11)}")
    a(f"v_cvt_pk_bf16_f32 {T(11)}, {T(11)}, {T(11)}")
    a(f"v_lshlrev_b32 {T(11)}, 16, {T(11)}")
    a(f"v_rcp_f32 {T(12)}, {T(11)}")
    a(f"s_mul_i32 {S(s_t2)}, {S(s_t2)}, 1280")
    a(f"v_lshlrev_b32 {T(4)}, 2, {V(v_l)}")
    a(f"v_add_u32 {T(4)}, {S(s_t2)}, {T(4)}")
    for k in range(5):
        lo, hi = F + 2 * k, F + 2 * k + 1
        a(f"v_sub_f32 {V(lo)}, {V(lo)}, {T(8)}")
        a(f"v_sub_f32 {V(hi)}, {V(hi)}, {T(8)}")
        a(f"v_cvt_pk_bf16_f32 {T(9)}, {V(lo)}, {V(hi)}")
        a(f"v_lshlrev_b32 {V(lo)}, 16, {T(9)}")
        a(f"v_and_b32 {V(hi)}, {S(s_hi)}, {T(9)}")
        a(f"v_mul_f32 {T(9)}, {V(lo)}, {T(12)}")
        a(f"v_mul_f32 {T(10)}, {V(hi)}, {T(12)}")
        a(f"v_fma_f32 {V(lo)}, -{T(9)}, {T(11)}, {V(lo)}")
        a(f"v_fma_f32 {V(hi)}, -{T(10)}, {T(11)}, {V(hi)}")
        a(f"v_fmac_f32 {T(9)}, {V(lo)}, {T(12)}")
        a(f"v_fmac_f32 {T(10)}, {V(hi)}, {T(12)}")
        a(f"v_cvt_pk_bf16_f32 {T(9)}, {T(9)}, {T(10)}")
        a(f"ds_write_b32 {T(4)}, {T(9)} offset:{L_XN + 256 * k}")
    a.label("L_b1")
    stamp(4)
    a("s_waitcnt lgkmcnt(0)")
    a("s_barrier")
    stamp(5)
    a(f"s_mul_i32 {S(s_non)}, {S(s_ep)}, 0x9E3779B1")
    a(f"s_add_u32 {S(s_non)}, {S(s_non)}, 0x7F4A7C15")
    a(f"s_mov_b32 {S(s_spin)}, {c['spin']}")
    a(f"s_cmp_lt_u32 {S(s_w)}, 5")
    a("s_cbranch_scc0 L_pre")
    a(f"v_bfe_u32 {T(1)}, {V(v_l)}, 3, 1")
    a(f"v_lshrrev_b32 {T(2)}, 4, {V(v_l)}")
    a(f"v_mul_u32_u24 {T(1)}, 1280, {T(1)}")
    a(f"v_mul_u32_u24 {T(2)}, 40, {T(2)}")
    a(f"s_mul_i32 {S(s_t0)}, {S(s_j)}, 160")
    a(f"v_add3_u32 {T(1)}, {T(1)}, {T(2)}, {S(s_t0)}")
    for k in range(5):
        a(f"ds_read_b64 {V(v_xp + 2 * k, 2)}, {T(1)} offset:{L_XN + 8 * k}")
    a("s_waitcnt lgkmcnt(0)")
    D1, D2 = v_d, v_d + 4
    for u in range(10):
        sel = s_sel1 if (u & 1) else s_sel0
        a(f"v_perm_b32 {T(2)}, {V(v_xp + (u >> 1))}, {V(v_xp + (u >> 1))}, {S(sel)}")
        a(f"v_perm_b32 {T(3)}, {V(v_xp + 5 + (u >> 1))}, {V(v_xp + 5 + (u >> 1))}, {S(sel)}")
        aprep(v_a, v_t + 2)
        aprep(v_a + 4, v_t + 3)
        a(f"s_waitcnt vmcnt({9 - u + n_after_role })")
        c1 = "0" if u == 0 else V(D1, 4)
        c2 = "0" if u == 0 else V(D2, 4)
        a(f"v_mfma_f32_16x16x32_bf16 {V(D1, 4)}, {V(v_a, 4)}, {V(v_w + 4 * u, 4)}, {c1}")
        a(f"v_mfma_f32_16x16x32_bf16 {V(D2, 4)}, {V(v_a + 4, 4)}, {V(v_w + 4 * u, 4)}, {c2}")
    stamp(6)
    PUB = v_t + 4
    a(f"v_mov_b32 {V(PUB + 1)}, {S(s_non)}")
    a(f"v_mov_b32 {V(PUB + 3)}, {S(s_non)}")
    a(f"s_mul_i32 {S(s_t0)}, {S(s_h)}, 3")
    a(f"s_lshl_b32 {S(s_t1)}, {S(s_h)}, 1")
    a(f"s_add_u32 {S(s_t1)}, {S(s_t1)}, 93")
    a(f"s_cmp_lt_u32 {S(s_w)}, 3")
    a(f"s_cselect_b32 {S(s_t0)}, {S(s_t0)}, {S(s_t1)}")
    a(f"s_add_u32 {S(s_t0)}, {S(s_t0)}, {S(s_w)}")
    a(f"s_lshl_b32 {S(s_t0)}, {S(s_t0)}, 13")
    a(f"s_add_u32 {S(s_t0)}, {S(s_t0)}, {WS_H0}")
    a(f"s_lshl_b32 {S(s_t1)}, {S(s_j)}, 10")
    a(f"s_add_u32 {S(s_t1)}, {S(s_t1)}, {S(s_t0)}")
    a(f"v_add_f32_dpp {V(PUB)}, {V(D2)}, {V(D1)} row_ror:8 row_mask:0xf bank_mask:0x3")
    a(f"v_add_f32_dpp {V(PUB + 2)}, {V(D2 + 1)}, {V(D1 + 1)} row_ror:8 row_mask:0xf bank_mask:0x3")
    a(f"v_add_f32_dpp {V(PUB)}, {V(D1 + 2)}, {V(D2 + 2)} row_ror:8 row_mask:0xf bank_mask:0xc")
    a(f"v_add_f32_dpp {V(PUB + 2)}, {V(D1 + 3)}, {V(D2 + 3)} row_ror:8 row_mask:0xf bank_mask:0xc")
    a(f"buffer_store_dwordx4 {V(PUB, 4)}, {V(v_l16)}, {S(R_WS, 4)}, {S(s_t1)} offen sc1")
    stamp(7)
    a(f"s_cmp_lt_u32 {S(s_w)}, 3")
    if "gq" in skip:
        a("s_branch L_pre")
    a("s_cbranch_scc0 L_pre")
    a("s_setprio 3")
    G = v_w
    a(f"v_lshrrev_b32 {T(1)}, 5, {V(v_l)}")
    a(f"v_and_b32 {T(2)}, 31, {V(v_l)}")
    a(f"v_lshlrev_b32 {T(1)}, 10, {T(1)}")
    a(f"v_lshl_add_u32 {T(1)}, {T(2)}, 4, {T(1)}")
    a(f"s_lshl_b32 {S(s_t1)}, {S(s_b)}, 9")
    a(f"s_add_u32 {S(s_t0)}, {S(s_t0)}, {S(s_t1)}")
    a(f"s_add_u32 {S(s_t1)}, {S(s_t0)}, 4096")
    a.label("L_gq")
    for u in range(4):
        so = s_t0 if u < 2 else s_t1
        off = " offset:2048" if (u & 1) else ""
        a(f"buffer_load_dwordx4 {V(G + 4 * u, 4)}, {T(1)}, {S(R_WS, 4)}, {S(so)} offen{off} sc1")
    a("s_waitcnt vmcnt(0)")
    for u in range(4):
        a(f"v_cmpx_eq_u32 vcc, {S(s_non)}, {V(G + 4 * u + 1)}")
        a(f"v_cmpx_eq_u32 vcc, {S(s_non)}, {V(G + 4 * u + 3)}")
    a("s_cmp_eq_u64 exec, -1")
    a("s_mov_b64 exec, -1")
    spin_check("L_gq", "L_gq_ok")
    stamp(8)
    for k in (0, 2):
        a(f"v_add_f32 {V(G + k)}, {V(G + k)}, {V(G + 4 + k)}")
        a(f"v_add_f32 {V(G + 8 + k)}, {V(G + 8 + k)}, {V(G + 12 + k)}")
    for k in (0, 2):
        a(f"v_add_f32 {V(G + k)}, {V(G + k)}, {V(G + 8 + k)}")
    for k in (0, 2):
        a(f"v_mov_b32 {V(G + k + 1)}, {V(G + k)}")
    for k in (0, 2):
        a(f"v_permlane32_swap_b32 {V(G + k + 1)}, {V(G + k)}")
    for k in (0, 2):
        a(f"v_add_f32 {V(G + k)}, {V(G + k)}, {V(G + k + 1)}")
    a(f"v_cvt_pk_bf16_f32 {V(G)}, {V(G)}, {V(G + 2)}")
    a(f"v_and_b32 {T(1)}, 7, {V(v_l)}")
    a(f"v_lshlrev_b32 {T(1)}, 4, {T(1)}")
    a(f"v_bfe_u32 {T(2)}, {V(v_l)}, 4, 1")
    a(f"v_lshl_add_u32 {T(1)}, {T(2)}, 3, {T(1)}")
    a(f"v_bfe_u32 {T(2)}, {V(v_l)}, 3, 1")
    a(f"v_lshl_add_u32 {T(1)}, {T(2)}, 2, {T(1)}")
    a(f"s_lshl_b32 {S(s_t0)}, {S(s_w)}, 7")
    a(f"v_add_u32 {T(1)}, {S(s_t0)}, {T(1)}")
    a(f"ds_write_b32 {T(1)}, {V(G)} offset:{L_Q}")
    a.label("L_pre")
    a("s_setprio 0")
    if "late" in skip:
        a("s_waitcnt lgkmcnt(0)")
        a("s_barrier")

    def ring_loads():
        for g in range(D):
            kv_load(q, g, g % D)
    if not c["pwfirst"]:
        ring_loads()
    a(f"s_lshl_b32 {S(s_t0)}, {S(s_h)}, 1")
    a(f"s_add_u32 {S(s_t0)}, {S(s_t0)}, 96")
    a(f"s_lshl_b32 {S(s_t0)}, {S(s_t0)}, 3")
    a(f"s_add_u32 {S(s_t0)}, {S(s_t0)}, {S(s_w)}")
    a(f"s_lshl_b32 {S(s_t0)}, {S(s_t0)}, 10")
    a(f"s_add_u32 {S(s_g0)}, {S(s_t0)}, {WS_H0}")
    a(f"s_add_u32 {S(s_g0 + 1)}, {S(s_g0)}, 8192")
    a(f"s_mul_i32 {S(s_t0)}, {S(s_h)}, 192")
    a(f"s_mul_i32 {S(s_t1)}, {S(s_w)}, 24")
    a(f"s_add_u32 {S(s_t0)}, {S(s_t0)}, {S(s_t1)}")
    a(f"s_mul_i32 {S(s_t0)}, {S(s_t0)}, 1280")
    a(f"s_mul_i32 {S(s_t2)}, {S(s_j)}, 160")
    a(f"s_add_u32 {S(s_t0)}, {S(s_t0)}, {S(s_t2)}")
    srd(R_WO, p_wo, s_t0, 24 * 1280)
    a(f"s_mul_i32 {S(s_t0)}, {S(s_h)}, 48")
    a(f"s_lshl_b32 {S(s_t1)}, {S(s_w)}, 3")
    a(f"s_add_u32 {S(s_t0)}, {S(s_t0)}, {S(s_t1)}")
    a(f"s_mul_i32 {S(s_t0)}, {S(s_t0)}, 1280")
    a(f"s_add_u32 {S(s_t0)}, {S(s_t0)}, {S(s_t2)}")
    srd(R_DN, p_down, s_t0, 8 * 1280)
    a(f"v_lshrrev_b32 {T(2)}, 4, {V(v_l)}")
    a(f"v_and_b32 {T(3)}, 15, {V(v_l)}")
    a(f"v_lshlrev_b32 {T(3)}, 4, {T(3)}")
    a(f"v_mul_u32_u24 {T(4)}, 7680, {T(2)}")
    a(f"v_add_u32 {T(4)}, {T(4)}, {T(3)}")
    a(f"v_mul_u32_u24 {T(5)}, 2560, {T(2)}")
    a(f"v_add_u32 {T(5)}, {T(5)}, {T(3)}")
    a(f"s_mov_b32 {S(s_t0)}, 5120")
    a(f"s_mov_b32 {S(s_msk)}, 0x03ff03ff")
    a(f"s_mov_b32 {S(s_msk + 1)}, 0x03ff03ff")
    a(f"s_mov_b64 exec, {S(s_msk, 2)}")
    for u in range(6):
        so = "0" if u < 4 else S(s_t0)
        off = 1280 * (u % 4)
        o = f" offset:{off}" if off else ""
        if "pw" not in skip:
            a(f"buffer_load_dwordx4 {V(v_pw + 4 * u, 4)}, {T(4)}, {S(R_WO, 4)}, {so} offen{o}{wpol}")
    if "pw" not in skip:
        q.issue("pw", 6)
    a(f"s_cmp_lt_u32 {S(s_w)}, 6")
    a("s_cbranch_scc0 L_nodn")
    for u in range(2 if "pw" not in skip else 0):
        o = " offset:1280" if u else ""
        a(f"buffer_load_dwordx4 {V(v_pw + 24 + 4 * u, 4)}, {T(5)}, {S(R_DN, 4)}, 0 offen{o}{wpol}")
    a.label("L_nodn")
    a("s_mov_b64 exec, -1")
    srd(R_X, p_x, None, 2560)
    a(f"s_and_b32 {S(s_t0)}, {S(s_h)}, 1")
    a(f"s_mul_i32 {S(s_t0)}, {S(s_t0)}, 640")
    a(f"s_bfe_u32 {S(s_t1)}, {S(s_h)}, 0x30001")
    a(f"s_mul_i32 {S(s_t1)}, {S(s_t1)}, 10")
    a(f"s_add_u32 {S(s_t0)}, {S(s_t0)}, {S(s_t1)}")
    a(f"s_mul_i32 {S(s_t1)}, {S(s_j)}, 80")
    a(f"s_add_u32 {S(s_t0)}, {S(s_t0)}, {S(s_t1)}")
    a(f"s_lshl_b32 {S(s_u0)}, {S(s_t0)}, 1")
    a(f"v_and_b32 {T(1)}, 7, {V(v_l)}")
    a(f"v_min_u32 {T(1)}, 4, {T(1)}")
    a(f"v_lshlrev_b32 {T(1)}, 2, {T(1)}")
    a(f"buffer_load_dword {V(v_xr)}, {T(1)}, {S(R_X, 4)}, {S(s_u0)} offen")
    q.issue("xr", 1)
    if c["pwfirst"]:
        ring_loads()
    a("s_waitcnt lgkmcnt(0)")
    stamp(25)
    a("s_barrier")
    stamp(9)
    a(f"v_and_b32 {T(1)}, 7, {V(v_l)}")
    a(f"v_lshlrev_b32 {T(1)}, 4, {T(1)}")
    for t in range(3):
        a(f"ds_read_b128 {V(v_q + 4 * t, 4)}, {T(1)} offset:{L_Q + 128 * t}")
    a(f"v_mov_b32 {V(v_mx)}, 0xff7fffff")
    if c["prio"] == "step":
        a("s_setprio 3")
    a("s_waitcnt lgkmcnt(0)")
    for i in range(16):
        slot = i % D
        n = q.wait(f"g{i}")
        a(f"s_waitcnt vmcnt({n})")
        a0, a1, a2 = v_t, v_t + 1, v_t + 2
        for t, acc in enumerate((a0, a1, a2)):
            for k in range(4):
                src = "0" if k == 0 else V(acc)
                a(f"v_dot2_f32_bf16 {V(acc)}, {ring(slot, 4 * t + k)}, {V(v_q + 4 * t + k)}, {src}")
        kv_load(q, i + D, slot)
        if i == c["ffstep"]:
            a(f"buffer_load_dwordx4 {V(v_ff, 4)}, {V(v_l16)}, {S(R_WS, 4)}, {S(s_g0)} offen sc1")
            a(f"buffer_load_dwordx4 {V(v_ff + 4, 4)}, {V(v_l16)}, {S(R_WS, 4)}, {S(s_g0 + 1)} offen sc1")
            q.issue("ff", 2)
        if c["prio"] == "step" and i == 7:
            a("s_setprio 2")
        a(f"v_add_f32 {V(a0)}, {V(a0)}, {V(a1)}")
        a(f"v_add_f32 {V(a0)}, {V(a0)}, {V(a2)}")
        for m in ("quad_perm:[1,0,3,2]", "quad_perm:[2,3,0,1]", "row_half_mirror"):
            a(f"v_add_f32_dpp {V(a0)}, {V(a0)}, {V(a0)} {m} row_mask:0xf bank_mask:0xf")
        a(f"v_cvt_pk_bf16_f32 {V(a0)}, {V(a0)}, {V(a0)}")
        a(f"v_lshlrev_b32 {V(a0)}, 16, {V(a0)}")
        a(f"v_mul_f32 {V(a0)}, {S(s_scale)}, {V(a0)}")
        a(f"v_cvt_pk_bf16_f32 {V(a0)}, {V(a0)}, {V(a0)}")
        a(f"v_and_b32 {V(v_s + i)}, {S(s_hi)}, {V(a0)}")
        a(f"v_max_f32 {V(v_mx)}, {V(v_mx)}, {V(v_s + i)}")
        if i == 0:
            stamp(10)
        if i == 7:
            stamp(11)
    stamp(12)
    if c["prio"] == "step":
        a("s_setprio 1")
    allsum(v_mx, v_t, "max")
    a(f"v_mul_f32 {T(4)}, {S(s_l2e)}, {V(v_mx)}")
    a(f"v_sub_f32 {T(4)}, 0, {T(4)}")
    for i in range(16):
        a(f"v_fma_f32 {V(v_s + i)}, {V(v_s + i)}, {S(s_l2e)}, {T(4)}")
    for i in range(16):
        a(f"v_exp_f32 {V(v_s + i)}, {V(v_s + i)}")
    a(f"v_add_f32 {V(v_ls)}, {V(v_s)}, {V(v_s + 1)}")
    for i in range(2, 16):
        a(f"v_add_f32 {V(v_ls)}, {V(v_ls)}, {V(v_s + i)}")
    for i in range(16):
        a(f"v_cvt_pk_bf16_f32 {V(v_s + i)}, {V(v_s + i)}, {V(v_s + i)}")
    allsum(v_ls, v_t, "add")
    a(f"s_lshl_b32 {S(s_t0)}, {S(s_w)}, 2")
    a(f"v_mov_b32 {T(1)}, {S(s_t0)}")
    a("s_mov_b64 exec, 1")
    a(f"ds_write_b32 {T(1)}, {V(v_mx)} offset:{L_MX}")
    a(f"ds_write_b32 {T(1)}, {V(v_ls)} offset:{L_LS}")
    a("s_mov_b64 exec, -1")
    a(f"v_lshrrev_b32 {T(2)}, 5, {V(v_l)}")
    a(f"s_lshl_b32 {S(s_t0)}, {S(s_w)}, 1")
    a(f"v_add_u32 {T(2)}, {S(s_t0)}, {T(2)}")
    a(f"v_mul_u32_u24 {V(v_pa)}, 768, {T(2)}")
    a(f"v_and_b32 {T(2)}, 7, {V(v_l)}")
    a(f"v_lshl_add_u32 {V(v_pa)}, {T(2)}, 5, {V(v_pa)}")
    a(f"v_bfe_u32 {T(2)}, {V(v_l)}, 4, 1")
    a(f"v_lshl_add_u32 {V(v_pa)}, {T(2)}, 4, {V(v_pa)}")
    stamp(13)
    def ffn_check():
        assert "ff" not in q.q
        a.label("L_ffchk")
        a(f"s_mov_b32 {S(s_msk)}, 0x3f3f3f3f")
        a(f"s_mov_b32 {S(s_msk + 1)}, 0x3f3f3f3f")
        a(f"s_mov_b64 exec, {S(s_msk, 2)}")
        for k in (1, 3, 5, 7):
            a(f"v_cmpx_eq_u32 vcc, {S(s_non)}, {V(v_ff + k)}")
        a(f"s_cmp_eq_u64 exec, {S(s_msk, 2)}")
        a("s_mov_b64 exec, -1")
        a("s_cbranch_scc1 L_ffok")
        a(f"buffer_load_dwordx4 {V(v_ff, 4)}, {V(v_l16)}, {S(R_WS, 4)}, {S(s_g0)} offen sc1")
        a(f"buffer_load_dwordx4 {V(v_ff + 4, 4)}, {V(v_l16)}, {S(R_WS, 4)}, {S(s_g0 + 1)} offen sc1")
        a("s_waitcnt vmcnt(0)")
        a(f"s_sub_u32 {S(s_spin)}, {S(s_spin)}, 1")
        a(f"s_cmp_lg_u32 {S(s_spin)}, 0")
        a("s_cbranch_scc1 L_ffchk")
        a.label("L_ffok")
        a(f"v_lshlrev_b32 {T(1)}, 3, {V(v_l)}")
        a(f"s_lshl_b32 {S(s_t0)}, {S(s_w)}, 10")
        a(f"v_add_u32 {T(1)}, {S(s_t0)}, {T(1)}")
        a(f"v_mov_b32 {V(v_ff + 1)}, {V(v_ff + 2)}")
        a(f"v_mov_b32 {V(v_ff + 5)}, {V(v_ff + 6)}")
        a(f"ds_write_b64 {T(1)}, {V(v_ff, 2)} offset:{L_FP}")
        a(f"ds_write_b64 {T(1)}, {V(v_ff + 4, 2)} offset:{L_FP + 512}")

    for i in range(16):
        g = 16 + i
        slot = g % D
        A = v_a + 4 * (i & 1)
        aprep(A, v_s + i)
        n = q.wait(f"g{g}")
        a(f"s_waitcnt vmcnt({n})")
        for t in range(3):
            cacc = "0" if i == 0 else V(v_acc + 4 * t, 4)
            a(f"v_mfma_f32_16x16x32_bf16 {V(v_acc + 4 * t, 4)}, {V(A, 4)}, {ring(slot, 4 * t, 4)}, {cacc}")
        if g + D < 32:
            kv_load(q, g + D, slot)
        if i == 1:
            ffn_check()
        if i == 7:
            if c["prio"] == "step":
                a("s_setprio 0")
            stamp(14)
    stamp(15)
    a("s_mov_b32 exec_lo, 0x00ff00ff")
    a("s_mov_b32 exec_hi, 0xff00ff00")
    for t in range(3):
        a(f"ds_write_b128 {V(v_pa)}, {V(v_acc + 4 * t, 4)} offset:{L_P + 256 * t}")
    a("s_mov_b64 exec, -1")
    a(f"s_lshl_b32 {S(s_t0)}, {S(s_h)}, 3")
    a(f"s_lshl_b32 {S(s_g0)}, {S(s_t0)}, 11")
    a(f"s_add_u32 {S(s_g0)}, {S(s_g0)}, {WS_H2}")
    a(f"s_lshl_b32 {S(s_t1)}, {S(s_j)}, 11")
    a(f"s_add_u32 {S(s_t1)}, {S(s_t1)}, {S(s_g0)}")
    for k in range(1, 4):
        a(f"s_add_u32 {S(s_g0 + k)}, {S(s_g0)}, {4096 * k}")
    a("s_waitcnt lgkmcnt(0)")
    a("s_barrier")
    stamp(16)
    G = v_r
    PUB = v_t + 4
    a(f"s_cmp_lt_u32 {S(s_w)}, 3")
    a("s_cbranch_scc0 L_notg2")
    FW = G + 32
    a(f"v_mov_b32 {T(1)}, 0")
    a(f"ds_read_b128 {V(FW, 4)}, {T(1)} offset:{L_MX}")
    a(f"ds_read_b128 {V(FW + 4, 4)}, {T(1)} offset:{L_MX + 16}")
    a(f"s_cmp_eq_u32 {S(s_w)}, 2")
    a("s_cbranch_scc1 L_pubml")

    def wave_factors():
        a(f"v_max3_f32 {T(4)}, {V(FW)}, {V(FW + 1)}, {V(FW + 2)}")
        a(f"v_max3_f32 {T(5)}, {V(FW + 3)}, {V(FW + 4)}, {V(FW + 5)}")
        a(f"v_max3_f32 {T(4)}, {T(4)}, {V(FW + 6)}, {V(FW + 7)}")
        a(f"v_max_f32 {V(v_mx)}, {T(4)}, {T(5)}")
        for k in range(8):
            a(f"v_sub_f32 {V(FW + k)}, {V(FW + k)}, {V(v_mx)}")
        for k in range(8):
            a(f"v_mul_f32 {V(FW + k)}, {S(s_l2e)}, {V(FW + k)}")
        for k in range(8):
            a(f"v_exp_f32 {V(FW + k)}, {V(FW + k)}")
    a(f"v_lshlrev_b32 {T(1)}, 3, v0")
    for k in range(16):
        a(f"ds_read_b64 {V(G + 2 * k, 2)}, {T(1)} offset:{L_P + 768 * k}")
    a(f"s_waitcnt lgkmcnt(15)")
    wave_factors()
    a(f"v_lshlrev_b32 {T(2)}, 4, v0")
    a("s_waitcnt lgkmcnt(0)")
    for k in range(8):
        a(f"v_pk_add_f32 {V(G + 4 * k, 2)}, {V(G + 4 * k, 2)}, {V(G + 4 * k + 2, 2)}")
    for k in range(8):
        sel = k & 1
        fw = V(FW + (k & ~1), 2)
        mods = f"op_sel:[0,{sel}] op_sel_hi:[1,{sel}]"
        if k < 2:
            a(f"v_pk_mul_f32 {V(G + 4 * k, 2)}, {V(G + 4 * k, 2)}, {fw} {mods}")
        else:
            mods3 = f"op_sel:[0,{sel},0] op_sel_hi:[1,{sel},1]"
            a(f"v_pk_fma_f32 {V(G + 4 * (k & 1), 2)}, {V(G + 4 * k, 2)}, {fw}, {V(G + 4 * (k & 1), 2)} {mods3}")
    a(f"v_add_f32 {V(PUB)}, {V(G)}, {V(G + 4)}")
    a(f"v_add_f32 {V(PUB + 2)}, {V(G + 1)}, {V(G + 5)}")
    a(f"v_mov_b32 {V(PUB + 1)}, {S(s_non)}")
    a(f"v_mov_b32 {V(PUB + 3)}, {S(s_non)}")
    a(f"v_cmp_gt_u32 vcc, 96, v0")
    a(f"s_and_b64 exec, exec, vcc")
    a(f"buffer_store_dwordx4 {V(PUB, 4)}, {T(2)}, {S(R_WS, 4)}, {S(s_t1)} offen sc1")
    a("s_mov_b64 exec, -1")
    a("s_branch L_g2")
    a.label("L_pubml")
    a(f"v_mov_b32 {T(1)}, 0")
    a(f"ds_read_b128 {V(G, 4)}, {T(1)} offset:{L_LS}")
    a(f"ds_read_b128 {V(G + 4, 4)}, {T(1)} offset:{L_LS + 16}")
    a(f"s_waitcnt lgkmcnt(2)")
    wave_factors()
    a(f"v_mov_b32 {V(PUB + 1)}, {S(s_non)}")
    a(f"v_mov_b32 {V(PUB + 3)}, {S(s_non)}")
    a(f"v_mov_b32 {T(2)}, 1536")
    a("s_waitcnt lgkmcnt(0)")
    for k in range(4):
        a(f"v_pk_mul_f32 {V(G + 2 * k, 2)}, {V(G + 2 * k, 2)}, {V(FW + 2 * k, 2)}")
    a(f"v_pk_add_f32 {V(G, 2)}, {V(G, 2)}, {V(G + 2, 2)}")
    a(f"v_pk_add_f32 {V(G + 4, 2)}, {V(G + 4, 2)}, {V(G + 6, 2)}")
    a(f"v_pk_add_f32 {V(G, 2)}, {V(G, 2)}, {V(G + 4, 2)}")
    a(f"v_mov_b32 {V(PUB)}, {V(v_mx)}")
    a(f"v_add_f32 {V(PUB + 2)}, {V(G)}, {V(G + 1)}")
    a("s_mov_b64 exec, 1")
    a(f"buffer_store_dwordx4 {V(PUB, 4)}, {T(2)}, {S(R_WS, 4)}, {S(s_t1)} offen sc1")
    a("s_mov_b64 exec, -1")
    a.label("L_g2")
    stamp(17)
    a(f"v_cmp_le_u32 vcc, 96, v0")
    a(f"v_cndmask_b32 {T(1)}, 0, 1, vcc")
    a(f"v_mul_u32_u24 {T(2)}, 96, {T(1)}")
    a(f"v_sub_u32 {T(2)}, v0, {T(2)}")
    a(f"v_lshlrev_b32 {T(3)}, 11, {T(1)}")
    a(f"v_lshl_add_u32 {T(8)}, {T(2)}, 4, {T(3)}")
    a(f"v_add_u32 {T(9)}, 1536, {T(3)}")
    a(f"v_mul_u32_u24 {T(10)}, 480, {T(1)}")
    a(f"v_lshl_add_u32 {T(10)}, {T(2)}, 2, {T(10)}")
    a.label("L_g2l")
    for k in range(4):
        a(f"buffer_load_dwordx4 {V(G + 16 + 4 * k, 4)}, {T(9)}, {S(R_WS, 4)}, {S(s_g0 + k)} offen sc1")
        a(f"buffer_load_dwordx4 {V(G + 4 * k, 4)}, {T(8)}, {S(R_WS, 4)}, {S(s_g0 + k)} offen sc1")
    a("s_waitcnt vmcnt(0)")
    for k in range(8):
        a(f"v_cmpx_eq_u32 vcc, {S(s_non)}, {V(G + 4 * k + 1)}")
        a(f"v_cmpx_eq_u32 vcc, {S(s_non)}, {V(G + 4 * k + 3)}")
    a("s_cmp_eq_u64 exec, -1")
    a("s_mov_b64 exec, -1")
    spin_check("L_g2l", "L_g2ok")
    stamp(18)
    M = lambda k: V(G + 16 + 4 * k)
    Ls = lambda k: V(G + 16 + 4 * k + 2)
    a(f"v_max3_f32 {T(1)}, {M(0)}, {M(1)}, {M(2)}")
    a(f"v_max_f32 {T(1)}, {T(1)}, {M(3)}")
    for k in range(4):
        a(f"v_sub_f32 {M(k)}, {M(k)}, {T(1)}")
    for k in range(4):
        a(f"v_mul_f32 {M(k)}, {S(s_l2e)}, {M(k)}")
    for k in range(4):
        a(f"v_exp_f32 {M(k)}, {M(k)}")
    a(f"v_mul_f32 {T(1)}, {M(0)}, {Ls(0)}")
    a(f"v_mul_f32 {T(2)}, {M(0)}, {V(G)}")
    a(f"v_mul_f32 {T(3)}, {M(0)}, {V(G + 2)}")
    for k in range(1, 4):
        a(f"v_fmac_f32 {T(1)}, {M(k)}, {Ls(k)}")
        a(f"v_fmac_f32 {T(2)}, {M(k)}, {V(G + 4 * k)}")
        a(f"v_fmac_f32 {T(3)}, {M(k)}, {V(G + 4 * k + 2)}")
    a(f"v_rcp_f32 {T(1)}, {T(1)}")
    a(f"v_mul_f32 {T(2)}, {T(2)}, {T(1)}")
    a(f"v_mul_f32 {T(3)}, {T(3)}, {T(1)}")
    a(f"v_cvt_pk_bf16_f32 {T(2)}, {T(2)}, {T(3)}")
    a(f"ds_write_b32 {T(10)}, {T(2)} offset:{L_VEC}")
    a("s_branch L_b4")
    a.label("L_notg2")
    a(f"s_cmp_eq_u32 {S(s_w)}, 3")
    a("s_cbranch_scc0 L_b4")
    a(f"v_lshlrev_b32 {T(1)}, 3, {V(v_l)}")
    for k in range(8):
        a(f"ds_read_b64 {V(G + 2 * k, 2)}, {T(1)} offset:{L_FP + 1024 * k}")
        a(f"ds_read_b64 {V(G + 16 + 2 * k, 2)}, {T(1)} offset:{L_FP + 1024 * k + 512}")
    a("s_waitcnt lgkmcnt(0)")
    for base in (G, G + 16):
        for st in (4, 2, 1):
            for k in range(st):
                a(f"v_pk_add_f32 {V(base + 2 * k, 2)}, {V(base + 2 * k, 2)}, {V(base + 2 * (k + st), 2)}")
    a(f"v_cvt_pk_bf16_f32 {T(2)}, {V(G)}, {V(G + 1)}")
    a(f"v_cvt_pk_bf16_f32 {T(3)}, {V(G + 16)}, {V(G + 17)}")
    g0, g1, u0, u1 = G, G + 1, G + 2, G + 3
    a(f"v_lshlrev_b32 {V(g0)}, 16, {T(2)}")
    a(f"v_and_b32 {V(g1)}, {S(s_hi)}, {T(2)}")
    a(f"v_lshlrev_b32 {V(u0)}, 16, {T(3)}")
    a(f"v_and_b32 {V(u1)}, {S(s_hi)}, {T(3)}")
    kz = -2.0 * 0.7978845608028654 * 1.4426950408889634
    a(f"v_mov_b32 {T(4)}, {f32(0.044715)}")
    a(f"v_mov_b32 {T(5)}, {f32(kz)}")
    for gg, tt in ((g0, 6), (g1, 7)):
        a(f"v_mul_f32 {T(tt)}, {V(gg)}, {V(gg)}")
        a(f"v_mul_f32 {T(tt)}, {T(tt)}, {V(gg)}")
        a(f"v_fma_f32 {T(tt)}, {T(tt)}, {T(4)}, {V(gg)}")
        a(f"v_mul_f32 {T(tt)}, {T(tt)}, {T(5)}")
        a(f"v_exp_f32 {T(tt)}, {T(tt)}")
        a(f"v_add_f32 {T(tt)}, 1.0, {T(tt)}")
        a(f"v_rcp_f32 {T(tt)}, {T(tt)}")
        a(f"v_mul_f32 {T(tt)}, {T(tt)}, {V(gg)}")
    a(f"v_cvt_pk_bf16_f32 {T(2)}, {T(6)}, {T(7)}")
    a(f"v_lshlrev_b32 {V(g0)}, 16, {T(2)}")
    a(f"v_and_b32 {V(g1)}, {S(s_hi)}, {T(2)}")
    a(f"v_mul_f32 {V(g0)}, {V(g0)}, {V(u0)}")
    a(f"v_mul_f32 {V(g1)}, {V(g1)}, {V(u1)}")
    a(f"v_cvt_pk_bf16_f32 {T(2)}, {V(g0)}, {V(g1)}")
    a(f"v_lshrrev_b32 {T(3)}, 5, {V(v_l)}")
    a(f"v_mul_u32_u24 {T(3)}, 480, {T(3)}")
    a(f"v_and_b32 {T(4)}, 7, {V(v_l)}")
    a(f"v_lshl_add_u32 {T(3)}, {T(4)}, 4, {T(3)}")
    a(f"v_bfe_u32 {T(4)}, {V(v_l)}, 4, 1")
    a(f"v_lshl_add_u32 {T(3)}, {T(4)}, 3, {T(3)}")
    a(f"v_bfe_u32 {T(4)}, {V(v_l)}, 3, 1")
    a(f"v_lshl_add_u32 {T(3)}, {T(4)}, 2, {T(3)}")
    a("s_mov_b32 exec_lo, 0x3f3f3f3f")
    a("s_mov_b32 exec_hi, 0x3f3f3f3f")
    a(f"ds_write_b32 {T(3)}, {T(2)} offset:{L_VEC + 384}")
    a("s_mov_b64 exec, -1")
    a.label("L_b4")
    a(f"v_bfe_u32 {T(1)}, {V(v_l)}, 3, 1")
    a(f"v_mul_u32_u24 {T(1)}, 480, {T(1)}")
    a(f"v_lshrrev_b32 {T(2)}, 4, {V(v_l)}")
    a(f"v_mul_u32_u24 {T(3)}, 12, {T(2)}")
    a(f"s_mul_i32 {S(s_t0)}, {S(s_w)}, 48")
    a(f"v_add3_u32 {T(3)}, {T(3)}, {T(1)}, {S(s_t0)}")
    a(f"v_lshlrev_b32 {T(2)}, 2, {T(2)}")
    a(f"s_lshl_b32 {S(s_t0)}, {S(s_w)}, 4")
    a(f"v_add3_u32 {T(2)}, {T(2)}, {T(1)}, {S(s_t0)}")
    a("s_waitcnt lgkmcnt(0)")
    a("s_barrier")
    stamp(19)
    a(f"v_add_u32 {T(3)}, {L_VEC}, {T(3)}")
    a(f"v_add_u32 {T(2)}, {L_VEC + 384}, {T(2)}")
    a(f"ds_read2_b32 {V(v_t + 4, 2)}, {T(3)} offset0:0 offset1:1")
    a(f"ds_read_b32 {T(6)}, {T(3)} offset:8")
    a(f"ds_read_b32 {T(7)}, {T(2)}")
    a(f"v_lshrrev_b32 {T(8)}, 5, {V(v_l)}")
    a(f"v_mul_u32_u24 {T(8)}, 320, {T(8)}")
    a(f"v_and_b32 {T(9)}, 15, {V(v_l)}")
    a(f"v_lshl_add_u32 {T(8)}, {T(9)}, 5, {T(8)}")
    a(f"v_bfe_u32 {T(9)}, {V(v_l)}, 4, 1")
    a(f"v_lshl_add_u32 {T(8)}, {T(9)}, 4, {T(8)}")
    a(f"s_mul_i32 {S(s_t0)}, {S(s_w)}, 640")
    a(f"v_add_u32 {T(8)}, {S(s_t0)}, {T(8)}")
    a("s_waitcnt lgkmcnt(0)")
    Y = v_acc
    for u in range(6):
        sel = s_sel1 if (u & 1) else s_sel0
        A = v_a + 4 * (u & 1)
        a(f"v_perm_b32 {T(1)}, {V(v_t + 4 + (u >> 1))}, {V(v_t + 4 + (u >> 1))}, {S(sel)}")
        aprep(A, v_t + 1)
        cacc = "0" if u == 0 else V(Y, 4)
        a(f"v_mfma_f32_16x16x32_bf16 {V(Y, 4)}, {V(A, 4)}, {V(v_pw + 4 * u, 4)}, {cacc}")
    a(f"s_cmp_lt_u32 {S(s_w)}, 6")
    a("s_cbranch_scc0 L_nodn2")
    for u in range(2):
        sel = s_sel1 if (u & 1) else s_sel0
        A = v_a + 4 * (u & 1)
        a(f"v_perm_b32 {T(1)}, {T(7)}, {T(7)}, {S(sel)}")
        aprep(A, v_t + 1)
        a(f"v_mfma_f32_16x16x32_bf16 {V(Y, 4)}, {V(A, 4)}, {V(v_pw + 24 + 4 * u, 4)}, {V(Y, 4)}")
    a.label("L_nodn2")
    a("s_nop 7")
    a("s_mov_b32 exec_lo, 0x03ff03ff")
    a("s_mov_b32 exec_hi, 0x03ff03ff")
    a(f"ds_write_b128 {T(8)}, {V(Y, 4)} offset:{L_Y}")
    a("s_mov_b64 exec, -1")
    a(f"s_lshl_b32 {S(s_t0)}, {S(s_j)}, 5")
    a(f"s_mul_i32 {S(s_g0)}, {S(s_t0)}, 1280")
    a(f"s_add_u32 {S(s_g0)}, {S(s_g0)}, {WS_H3}")
    a(f"s_mul_i32 {S(s_t1)}, {S(s_h)}, 1280")
    a(f"s_add_u32 {S(s_t1)}, {S(s_t1)}, {S(s_g0)}")
    a("s_waitcnt lgkmcnt(0)")
    a("s_barrier")
    stamp(20)
    a(f"s_cmp_lt_u32 {S(s_w)}, 2")
    a("s_cbranch_scc0 L_fin")
    a(f"v_lshlrev_b32 {T(1)}, 3, v0")
    for k in range(8):
        a(f"ds_read_b64 {V(G + 2 * k, 2)}, {T(1)} offset:{L_Y + 640 * k}")
    a(f"v_mov_b32 {V(PUB + 1)}, {S(s_non)}")
    a(f"v_mov_b32 {V(PUB + 3)}, {S(s_non)}")
    a(f"v_lshlrev_b32 {T(2)}, 4, v0")
    a("s_waitcnt lgkmcnt(0)")
    for st in (4, 2):
        for k in range(st):
            a(f"v_pk_add_f32 {V(G + 2 * k, 2)}, {V(G + 2 * k, 2)}, {V(G + 2 * (k + st), 2)}")
    a(f"v_add_f32 {V(PUB)}, {V(G)}, {V(G + 2)}")
    a(f"v_add_f32 {V(PUB + 2)}, {V(G + 1)}, {V(G + 3)}")
    a(f"v_cmp_gt_u32 vcc, 80, v0")
    a(f"s_and_b64 exec, exec, vcc")
    a(f"buffer_store_dwordx4 {V(PUB, 4)}, {T(2)}, {S(R_WS, 4)}, {S(s_t1)} offen sc1")
    stamp(21)
    finish()
    a.label("L_fin")
    a(f"s_cmp_eq_u32 {S(s_w)}, 2")
    a("s_cbranch_scc0 L_end")
    a(f"s_cmp_lt_u32 {S(s_h)}, 16")
    a("s_cbranch_scc0 L_end")
    a(f"s_and_b32 {S(s_t0)}, {S(s_h)}, 1")
    a(f"s_mul_i32 {S(s_t0)}, {S(s_t0)}, 640")
    a(f"s_lshr_b32 {S(s_t1)}, {S(s_h)}, 1")
    a(f"s_mul_i32 {S(s_t1)}, {S(s_t1)}, 80")
    a(f"s_add_u32 {S(s_t0)}, {S(s_t0)}, {S(s_t1)}")
    a(f"s_add_u32 {S(s_g0)}, {S(s_g0)}, {S(s_t0)}")
    for k in range(1, 4):
        a(f"s_add_u32 {S(s_g0 + k)}, {S(s_g0)}, {10240 * k}")
    a(f"v_lshrrev_b32 {T(1)}, 3, {V(v_l)}")
    a(f"v_mul_u32_u24 {T(1)}, 1280, {T(1)}")
    a(f"v_and_b32 {T(2)}, 7, {V(v_l)}")
    a(f"v_lshl_add_u32 {T(1)}, {T(2)}, 4, {T(1)}")
    a(f"s_mov_b32 {S(s_msk)}, 0x1f1f1f1f")
    a(f"s_mov_b32 {S(s_msk + 1)}, 0x1f1f1f1f")
    a.label("L_g3l")
    a(f"s_mov_b64 exec, {S(s_msk, 2)}")
    for k in range(4):
        a(f"buffer_load_dwordx4 {V(G + 4 * k, 4)}, {T(1)}, {S(R_WS, 4)}, {S(s_g0 + k)} offen sc1")
    a("s_waitcnt vmcnt(0)")
    for k in range(4):
        a(f"v_cmpx_eq_u32 vcc, {S(s_non)}, {V(G + 4 * k + 1)}")
        a(f"v_cmpx_eq_u32 vcc, {S(s_non)}, {V(G + 4 * k + 3)}")
    a(f"s_cmp_eq_u64 exec, {S(s_msk, 2)}")
    a("s_mov_b64 exec, -1")
    spin_check("L_g3l", "L_g3ok")
    stamp(22)
    for k in (0, 2):
        a(f"v_add_f32 {V(G + k)}, {V(G + k)}, {V(G + 4 + k)}")
        a(f"v_add_f32 {V(G + 8 + k)}, {V(G + 8 + k)}, {V(G + 12 + k)}")
    for k in (0, 2):
        a(f"v_add_f32 {V(G + k)}, {V(G + k)}, {V(G + 8 + k)}")
    allsum(G, v_t + 3, "add")
    allsum(G + 2, v_t + 4, "add")
    a(f"v_lshlrev_b32 {T(3)}, 16, {V(v_xr)}")
    a(f"v_and_b32 {T(4)}, {S(s_hi)}, {V(v_xr)}")
    a(f"v_add_f32 {T(3)}, {T(3)}, {V(G)}")
    a(f"v_add_f32 {T(4)}, {T(4)}, {V(G + 2)}")
    a(f"v_cvt_pk_bf16_f32 {T(3)}, {T(3)}, {T(4)}")
    srd(R_OUT, p_out, None, 2560)
    a(f"v_lshlrev_b32 {T(2)}, 2, {T(2)}")
    a("s_mov_b64 exec, 0x1f")
    a(f"buffer_store_dword {T(3)}, {T(2)}, {S(R_OUT, 4)}, {S(s_u0)} offen")
    a("s_cmp_eq_u32 s2, 0")
    a("s_cbranch_scc0 L_fin2")
    a("s_mov_b64 exec, 1")
    a(f"v_mov_b32 {T(5)}, {S(s_non)}")
    a(f"v_mov_b32 {T(6)}, 0")
    a(f"buffer_store_dword {T(5)}, {T(6)}, {S(R_WS, 4)}, 0 offen sc1")
    a.label("L_fin2")
    a("s_mov_b64 exec, -1")
    stamp(23)
    a.label("L_end")
    if c["stamps"]:
        a("s_mov_b64 exec, -1")
        stamp(24)
        a(f"v_lshlrev_b32 {T(1)}, 2, {V(v_l)}")
        a("s_mov_b32 exec_hi, 0")
        a(f"buffer_store_dword {V(v_st)}, {T(1)}, {S(R_WS, 4)}, {S(s_sto)} offen")
        if c["dbg"]:
            a(f"s_cmp_eq_u32 {S(s_w)}, 2")
            a("s_cbranch_scc1 L_dbg")
            a(f"s_cmp_eq_u32 {S(s_w)}, 7")
            a("s_cbranch_scc0 L_exit")
            a.label("L_dbg")
            a("s_mov_b64 exec, -1")
            a(f"v_mov_b32 {T(2)}, 0")
            sel = [(0, 1), (0, 0), (5, 0), (7, 0), (8, 1), (8, 0), (9, 0), (12, 0), (16, 1), (16, 0), (18, 0), (21, 0), (24, 0), (9, 1), (3, 0), (10, 0)]
            for i, (k, mn) in enumerate(sel):
                a(f"v_readlane_b32 {S(s_t0)}, {V(v_st)}, {k}")
                if mn:
                    a(f"s_not_b32 {S(s_t1)}, {S(s_t0)}")
                    a(f"s_cmp_eq_u32 {S(s_t0)}, 0")
                    a(f"s_cselect_b32 {S(s_t0)}, 0, {S(s_t1)}")
                a(f"v_writelane_b32 {T(2)}, {S(s_t0)}, {i}")
            srd(R_OUT, p_dbg, None, 256)
            a("s_mov_b64 exec, 0xffff")
            a(f"buffer_atomic_umax {T(2)}, {T(1)}, {S(R_OUT, 4)}, 0 offen sc1")
    a.label("L_exit")
    a("s_endpgm")

    body = a.finish()
    for p in a.problems:
        print("HAZARD-PROBLEM:", p, file=sys.stderr)
    hdr = open("parallel_sum__mha_block_cached__geglu_ffn__decode.s.ref").read().split("\n")
    top = [l for l in hdr if l.startswith(";") and "@launch" not in l and not l.startswith("; Override") and not l.startswith("; grid=")]
    lead = []
    for l in hdr:
        if not l.startswith(";"):
            break
        if "@launch" in l:
            continue
        lead.append(l)
    out = lead + [f"; @launch grid=(256,1,1) block=(512,1,1) lds={LDS_BYTES}"]
    out += ['.amdgcn_target "amdgcn-amd-amdhsa--gfx950"', ".text", f".globl {NAME}", ".p2align 8", f".type {NAME},@function"]
    out += [(l if l.endswith(":") else "    " + l) for l in body]
    out += ['.section .rodata,"a"', ".p2align 6", f".amdhsa_kernel {NAME}",
            f"  .amdhsa_next_free_vgpr {NV}", "  .amdhsa_next_free_sgpr 102", f"  .amdhsa_accum_offset {NV}",
            "  .amdhsa_group_segment_fixed_size 0", "  .amdhsa_kernarg_size 96", "  .amdhsa_user_sgpr_count 2",
            "  .amdhsa_user_sgpr_kernarg_segment_ptr 1", "  .amdhsa_system_sgpr_workgroup_id_x 1", ".end_amdhsa_kernel", ""]
    return "\n".join(out), a


if __name__ == "__main__":
    cfg = {}
    outp = "parallel_sum__mha_block_cached__geglu_ffn__decode.s"
    for arg in sys.argv[1:]:
        k, v = arg.split("=", 1)
        if k == "out":
            outp = v
        else:
            try:
                cfg[k] = int(v)
            except ValueError:
                cfg[k] = v
    txt, a = gen(cfg)
    open(outp, "w").write(txt)
    print(f"wrote {outp}: {len(txt.splitlines())} lines, {a.nfix} nops inserted")
```

```python
import sys, os, struct
sys.path.insert(0, os.path.dirname(os.path.abspath(__file__)))
from asmlib import Asm, VmQ, V, S

NAME = "parallel_sum__mha_block_cached__geglu_ffn__decode_kernel"

DEFAULT = dict(
    D=6,
    D0=0,
    kpol="nt",
    wpol="",
    stamps=0,
    spin=400000,
    prio="",
    ffstep=8,
    pwfirst=0,
    rot=0,
    dbg=0,
    pad=0,
    skip="",
)

WS_EP = 0
WS_H0 = 4096
WS_H2 = WS_H0 + 160 * 8 * 1024
WS_H3 = WS_H2 + 256 * 2048
WS_ST = WS_H3 + 256 * 1280
WS_END = WS_ST + 256 * 8 * 16 * 8

L_XN = 0
L_Q = 2560
L_MX = 3072
L_LS = 3104
L_FP = 4096
L_P = 12288
L_VEC = 24576
L_Y = 25600
LDS_BYTES = 32768

s_w, s_h, s_j, s_b, s_non = 3, 4, 5, 6, 7
s_t0, s_t1, s_t2, s_t3, s_t4, s_t5 = 8, 9, 10, 11, 12, 13
s_ep, s_spin = 14, 15
p_x, p_k, p_v, p_wq, p_wo, p_bx, p_gate, p_up = 16, 18, 20, 22, 24, 26, 28, 30
p_down, p_out, p_dbg, p_ws = 32, 34, 36, 38
R_K, R_V, R_W, R_WO, R_DN, R_WS, R_X, R_OUT = 40, 44, 48, 52, 56, 60, 64, 68
s_ko = 72
s_sel0, s_sel1 = 73, 74
s_scale, s_l2e = 75, 76
s_rs = 77
s_g0 = 78
s_msk = 82
s_u0 = 84
s_tm = 92
s_sto = 94
s_hi = 95

v_tid = 0
v_l = 1
v_ko = 2
v_m = 3
v_l16 = 7
v_t = 8
v_mx = 24
v_ls = 25
v_pa = 26
v_xr = 27
v_a = 28
v_q = 36
v_s = 48
v_acc = 64
v_ff = 76
v_pw = 84
v_w = 116
v_xp = 156
v_d = 166
v_st = 175
v_r = 176
NV = 256


def f32(x):
    return "0x%08x" % struct.unpack("<I", struct.pack("<f", x))[0]


def gen(cfg):
    c = dict(DEFAULT)
    c.update(cfg)
    skip = set(str(c["skip"]).split("+"))
    D, D0 = c["D"], c["D0"]
    kpol = (" " + c["kpol"]) if c["kpol"] else ""
    wpol = (" " + c["wpol"]) if c["wpol"] else ""
    a = Asm()
    ring = lambda slot, k=0, n=1: V(v_r + 12 * slot + k, n)
    assert v_r + 12 * D <= NV

    def stamp(idx):
        if not c["stamps"]:
            return
        a(f"s_memrealtime {S(s_tm, 2)}")
        a("s_waitcnt lgkmcnt(0)")
        a(f"v_writelane_b32 {V(v_st)}, {S(s_tm)}, {idx}")

    def finish(lbl=None):
        if c["stamps"]:
            a("s_branch L_end")
        else:
            a("s_endpgm")

    def srd(r, ptr, off_sgpr, nrec):
        if off_sgpr is None:
            a(f"s_mov_b32 {S(r)}, {S(ptr)}")
            a(f"s_mov_b32 {S(r + 1)}, {S(ptr + 1)}")
        else:
            a(f"s_add_u32 {S(r)}, {S(ptr)}, {S(off_sgpr)}")
            a(f"s_addc_u32 {S(r + 1)}, {S(ptr + 1)}, 0")
        a(f"s_mov_b32 {S(r + 2)}, {nrec}")
        a(f"s_mov_b32 {S(r + 3)}, 0x20000")

    def kv_load(q, g, slot):
        r = R_K if g < 16 else R_V
        gi = g % 16
        a(f"s_mov_b32 {S(s_ko)}, {gi * 24576}")
        for t in range(3):
            off = f" offset:{128 * t}" if t else ""
            a(f"buffer_load_dwordx4 {ring(slot, 4 * t, 4)}, {V(v_ko)}, {S(r, 4)}, {S(s_ko)} offen{off}{kpol}")
        q.issue(f"g{g}", 3)

    def spin_check(lbl_retry, lbl_go):
        a(f"s_cbranch_scc1 {lbl_go}")
        a(f"s_sub_u32 {S(s_spin)}, {S(s_spin)}, 1")
        a(f"s_cmp_lg_u32 {S(s_spin)}, 0")
        a(f"s_cbranch_scc1 {lbl_retry}")
        a.label(lbl_go)

    def allsum(reg, tmp, op="add"):
        o = f"v_{op}_f32"
        a(f"{o}_dpp {V(reg)}, {V(reg)}, {V(reg)} row_ror:8 row_mask:0xf bank_mask:0xf")
        a(f"v_mov_b32 {V(tmp)}, {V(reg)}")
        a(f"v_permlane16_swap_b32 {V(tmp)}, {V(reg)}")
        a(f"{o} {V(reg)}, {V(reg)}, {V(tmp)}")
        a(f"v_mov_b32 {V(tmp)}, {V(reg)}")
        a(f"v_permlane32_swap_b32 {V(tmp)}, {V(reg)}")
        a(f"{o} {V(reg)}, {V(reg)}, {V(tmp)}")

    def aprep(dst, dup):
        for k in range(4):
            a(f"v_and_b32 {V(dst + k)}, {V(dup)}, {V(v_m + k)}")

    T = lambda k: V(v_t + k)

    a.label(NAME)
    a(f"s_cmpk_ge_u32 s2, 0x100")
    a("s_cbranch_scc1 L_exit")
    a(f"s_load_dwordx16 {S(16, 16)}, s[0:1], 0x0")
    a(f"s_load_dwordx8 {S(32, 8)}, s[0:1], 0x40")
    if c["stamps"]:
        a(f"s_memrealtime {S(s_u0 + 6, 2)}")
    if c["pad"]:
        a(f"s_memrealtime {S(96, 2)}")
    a(f"v_lshrrev_b32 {T(0)}, 6, v0")
    a(f"v_and_b32 {V(v_l)}, 63, v0")
    if c["rot"]:
        a(f"s_add_u32 {S(s_t0)}, s2, {c['rot']}")
        a(f"s_and_b32 {S(s_t0)}, {S(s_t0)}, 7")
    else:
        a(f"s_and_b32 {S(s_t0)}, s2, 7")
    a(f"v_readfirstlane_b32 {S(s_w)}, {T(0)}")
    a(f"s_lshr_b32 {S(s_t1)}, s2, 3")
    a(f"s_and_b32 {S(s_t2)}, {S(s_t1)}, 3")
    a(f"s_lshl2_add_u32 {S(s_h)}, {S(s_t0)}, {S(s_t2)}")
    a(f"s_lshr_b32 {S(s_j)}, {S(s_t1)}, 2")
    a(f"s_and_b32 {S(s_b)}, {S(s_j)}, 1")
    a(f"s_lshr_b32 {S(s_t0)}, {S(s_j)}, 1")
    a(f"s_lshl_b32 {S(s_t1)}, {S(s_b)}, 5")
    a(f"s_add_u32 {S(s_t1)}, {S(s_t1)}, {S(s_h)}")
    a(f"s_lshl2_add_u32 {S(s_t1)}, {S(s_t1)}, {S(s_t0)}")
    a(f"s_mul_i32 {S(s_t1)}, {S(s_t1)}, 0x60000")
    a(f"s_mul_i32 {S(s_t2)}, {S(s_w)}, 3072")
    a(f"s_add_u32 {S(s_t1)}, {S(s_t1)}, {S(s_t2)}")
    a(f"v_lshrrev_b32 {T(1)}, 3, {V(v_l)}")
    a(f"v_and_b32 {T(2)}, 7, {V(v_l)}")
    a(f"v_lshlrev_b32 {T(3)}, 4, {T(2)}")
    a(f"v_mul_u32_u24 {V(v_ko)}, 384, {T(1)}")
    a(f"v_add_u32 {V(v_ko)}, {V(v_ko)}, {T(3)}")
    a(f"v_lshlrev_b32 {V(v_l16)}, 4, {V(v_l)}")
    a("s_waitcnt lgkmcnt(0)")
    if c["stamps"]:
        a(f"v_mov_b32 {V(v_st)}, 0")
        a(f"v_writelane_b32 {V(v_st)}, {S(s_u0 + 6)}, 0")
        a(f"s_getreg_b32 {S(s_u0 + 6)}, hwreg(HW_REG_XCC_ID)")
        a(f"s_or_b32 {S(s_u0 + 6)}, {S(s_u0 + 6)}, 0x80000000")
        a(f"v_writelane_b32 {V(v_st)}, {S(s_u0 + 6)}, 26")
        a(f"s_getreg_b32 {S(s_u0 + 6)}, hwreg(HW_REG_HW_ID)")
        a(f"s_or_b32 {S(s_u0 + 6)}, {S(s_u0 + 6)}, 0x80000000")
        a(f"v_writelane_b32 {V(v_st)}, {S(s_u0 + 6)}, 27")
    stamp(1)
    a(f"s_load_dword {S(s_ep)}, {S(p_ws, 2)}, 0x0")
    q = VmQ()
    a(f"s_cmp_lt_u32 {S(s_w)}, 5")
    a("s_cbranch_scc1 L_gemvld")
    a(f"s_cmp_eq_u32 {S(s_w)}, 7")
    a("s_cbranch_scc1 L_common")
    a("s_setprio 3")
    srd(R_X, p_x, None, 2560)
    a(f"s_sub_u32 {S(s_t2)}, {S(s_w)}, 5")
    a(f"s_mul_i32 {S(s_t2)}, {S(s_t2)}, 1280")
    a(f"v_lshlrev_b32 {T(4)}, 2, {V(v_l)}")
    for k in range(5):
        a(f"buffer_load_dword {V(v_w + k)}, {T(4)}, {S(R_X, 4)}, {S(s_t2)} offen offset:{256 * k}")
    a("s_branch L_common")
    a.label("L_gemvld")
    a("s_setprio 2")
    a(f"s_cmp_lt_u32 {S(s_w)}, 3")
    a(f"s_cselect_b32 {S(s_t2)}, 4, 1")
    a(f"s_mul_i32 {S(s_rs)}, {S(s_t2)}, 3072")
    a(f"s_mul_i32 {S(s_t2)}, {S(s_t2)}, 96")
    a(f"s_cselect_b32 {S(s_t3)}, 128, 0")
    a(f"s_cselect_b64 {S(s_msk, 2)}, -1, 0")
    a(f"s_cselect_b32 {S(s_t4)}, {S(p_wq)}, {S(p_gate)}")
    a(f"s_cselect_b32 {S(s_t5)}, {S(p_wq + 1)}, {S(p_gate + 1)}")
    a(f"s_cmp_eq_u32 {S(s_w)}, 4")
    a(f"s_cselect_b32 {S(s_t4)}, {S(p_up)}, {S(s_t4)}")
    a(f"s_cselect_b32 {S(s_t5)}, {S(p_up + 1)}, {S(s_t5)}")
    a(f"s_or_b32 {S(s_msk)}, {S(s_msk)}, 0x3f3f3f3f")
    a(f"s_or_b32 {S(s_msk + 1)}, {S(s_msk + 1)}, 0x3f3f3f3f")
    a(f"s_mul_i32 {S(s_t2)}, {S(s_t2)}, {S(s_h)}")
    a(f"s_mul_i32 {S(s_t3)}, {S(s_t3)}, {S(s_w)}")
    a(f"s_add_u32 {S(s_t2)}, {S(s_t2)}, {S(s_t3)}")
    a(f"s_mul_i32 {S(s_t3)}, {S(s_rs)}, {S(s_j)}")
    a(f"s_mul_i32 {S(s_t3)}, {S(s_t3)}, 80")
    a(f"s_add_u32 {S(s_t2)}, {S(s_t2)}, {S(s_t3)}")
    a(f"s_add_u32 {S(R_W)}, {S(s_t4)}, {S(s_t2)}")
    a(f"s_addc_u32 {S(R_W + 1)}, {S(s_t5)}, 0")
    a(f"s_mul_i32 {S(R_W + 2)}, {S(s_rs)}, 80")
    a(f"s_mov_b32 {S(R_W + 3)}, 0x20000")
    a(f"s_mul_i32 {S(s_t3)}, {S(s_rs)}, 10")
    a(f"v_mul_u32_u24 {T(4)}, {S(s_t3)}, {T(1)}")
    a(f"v_add_u32 {T(4)}, {T(4)}, {T(3)}")
    a(f"s_mov_b32 {S(s_t2)}, 0")
    a(f"s_mov_b64 exec, {S(s_msk, 2)}")
    for u in range(10):
        if "gw" not in skip:
            a(f"buffer_load_dwordx4 {V(v_w + 4 * u, 4)}, {T(4)}, {S(R_W, 4)}, {S(s_t2)} offen{wpol}")
        if u < 9:
            a(f"s_add_u32 {S(s_t2)}, {S(s_t2)}, {S(s_rs)}")
    a("s_mov_b64 exec, -1")
    a.label("L_common")
    srd(R_K, p_k, s_t1, 0x60000)
    srd(R_V, p_v, s_t1, 0x60000)
    srd(R_WS, p_ws, None, WS_END)
    n_after_role = 0
    if c["stamps"]:
        a(f"s_lshl_b32 {S(s_sto)}, s2, 3")
        a(f"s_add_u32 {S(s_sto)}, {S(s_sto)}, {S(s_w)}")
        a(f"s_lshl_b32 {S(s_sto)}, {S(s_sto)}, 7")
        a(f"s_add_u32 {S(s_sto)}, {S(s_sto)}, {WS_ST}")
    stamp(2)
    a(f"s_mov_b32 {S(s_sel0)}, 0x01000100")
    a(f"s_mov_b32 {S(s_sel1)}, 0x03020302")
    a(f"s_mov_b32 {S(s_scale)}, {f32(192 ** -0.5)}")
    a(f"s_mov_b32 {S(s_l2e)}, {f32(1.4426950408889634)}")
    a(f"s_mov_b32 {S(s_hi)}, 0xffff0000")
    a(f"s_mov_b32 {S(s_t0)}, 0xffff")
    a(f"v_and_b32 {T(5)}, 1, {V(v_l)}")
    a(f"v_lshlrev_b32 {T(5)}, 4, {T(5)}")
    a(f"v_lshlrev_b32 {T(5)}, {T(5)}, {S(s_t0)}")
    a(f"v_bfe_u32 {T(6)}, {V(v_l)}, 1, 2")
    a(f"v_lshlrev_b32 {T(6)}, {T(6)}, 1")
    for k in range(4):
        a(f"v_bfe_i32 {T(7)}, {T(6)}, {k}, 1")
        a(f"v_and_b32 {V(v_m + k)}, {T(7)}, {T(5)}")
    a(f"s_sub_u32 {S(s_t2)}, {S(s_w)}, 5")
    a(f"s_cmp_lt_u32 {S(s_t2)}, 2")
    a("s_cbranch_scc0 L_b1")
    X = v_w
    F = v_w + 8
    a(f"s_waitcnt vmcnt({n_after_role})")
    stamp(3)
    for k in range(5):
        a(f"v_lshlrev_b32 {V(F + 2 * k)}, 16, {V(X + k)}")
        a(f"v_and_b32 {V(F + 2 * k + 1)}, {S(s_hi)}, {V(X + k)}")

    def wave_total(reg, sdst):
        for m in ("quad_perm:[1,0,3,2]", "quad_perm:[2,3,0,1]", "row_half_mirror", "row_mirror"):
            a(f"v_add_f32_dpp {V(reg)}, {V(reg)}, {V(reg)} {m} row_mask:0xf bank_mask:0xf")
        a(f"v_add_f32_dpp {V(reg)}, {V(reg)}, {V(reg)} row_bcast:15 row_mask:0xa bank_mask:0xf")
        a(f"v_add_f32_dpp {V(reg)}, {V(reg)}, {V(reg)} row_bcast:31 row_mask:0xc bank_mask:0xf")
        a(f"v_readlane_b32 {S(sdst)}, {V(reg)}, 63")

    a(f"v_add_f32 {T(8)}, {V(F)}, {V(F + 1)}")
    for k in range(2, 10):
        a(f"v_add_f32 {T(8)}, {T(8)}, {V(F + k)}")
    wave_total(v_t + 8, s_t3)
    a(f"v_mov_b32 {T(9)}, {f32(1 / 640)}")
    a(f"v_mul_f32 {T(8)}, {S(s_t3)}, {T(9)}")
    a(f"v_sub_f32 {T(10)}, {V(F)}, {T(8)}")
    a(f"v_mul_f32 {T(11)}, {T(10)}, {T(10)}")
    for k in range(1, 10):
        a(f"v_sub_f32 {T(10)}, {V(F + k)}, {T(8)}")
        a(f"v_fmac_f32 {T(11)}, {T(10)}, {T(10)}")
    wave_total(v_t + 11, s_t3)
    a(f"v_mul_f32 {T(11)}, {S(s_t3)}, {T(9)}")
    a(f"v_cvt_pk_bf16_f32 {T(11)}, {T(11)}, {T(8)}")
    a(f"v_and_b32 {T(8)}, {S(s_hi)}, {T(11)}")
    a(f"v_lshlrev_b32 {T(11)}, 16, {T(11)}")
    a(f"v_add_f32 {T(11)}, {f32(1e-5)}, {T(11)}")
    a(f"v_cvt_pk_bf16_f32 {T(11)}, {T(11)}, {T(11)}")
    a(f"v_lshlrev_b32 {T(11)}, 16, {T(11)}")
    a(f"v_sqrt_f32 {T(11)}, {T(11)}")
    a(f"v_cvt_pk_bf16_f32 {T(11)}, {T(11)}, {T(11)}")
    a(f"v_lshlrev_b32 {T(11)}, 16, {T(11)}")
    a(f"v_rcp_f32 {T(12)}, {T(11)}")
    a(f"s_mul_i32 {S(s_t2)}, {S(s_t2)}, 1280")
    a(f"v_lshlrev_b32 {T(4)}, 2, {V(v_l)}")
    a(f"v_add_u32 {T(4)}, {S(s_t2)}, {T(4)}")
    for k in range(5):
        lo, hi = F + 2 * k, F + 2 * k + 1
        a(f"v_sub_f32 {V(lo)}, {V(lo)}, {T(8)}")
        a(f"v_sub_f32 {V(hi)}, {V(hi)}, {T(8)}")
        a(f"v_cvt_pk_bf16_f32 {T(9)}, {V(lo)}, {V(hi)}")
        a(f"v_lshlrev_b32 {V(lo)}, 16, {T(9)}")
        a(f"v_and_b32 {V(hi)}, {S(s_hi)}, {T(9)}")
        a(f"v_mul_f32 {T(9)}, {V(lo)}, {T(12)}")
        a(f"v_mul_f32 {T(10)}, {V(hi)}, {T(12)}")
        a(f"v_fma_f32 {V(lo)}, -{T(9)}, {T(11)}, {V(lo)}")
        a(f"v_fma_f32 {V(hi)}, -{T(10)}, {T(11)}, {V(hi)}")
        a(f"v_fmac_f32 {T(9)}, {V(lo)}, {T(12)}")
        a(f"v_fmac_f32 {T(10)}, {V(hi)}, {T(12)}")
        a(f"v_cvt_pk_bf16_f32 {T(9)}, {T(9)}, {T(10)}")
        a(f"ds_write_b32 {T(4)}, {T(9)} offset:{L_XN + 256 * k}")
    a.label("L_b1")
    stamp(4)
    a("s_waitcnt lgkmcnt(0)")
    a("s_barrier")
    stamp(5)
    a(f"s_mul_i32 {S(s_non)}, {S(s_ep)}, 0x9E3779B1")
    a(f"s_add_u32 {S(s_non)}, {S(s_non)}, 0x7F4A7C15")
    a(f"s_mov_b32 {S(s_spin)}, {c['spin']}")
    a(f"s_cmp_lt_u32 {S(s_w)}, 5")
    a("s_cbranch_scc0 L_pre")
    a(f"v_bfe_u32 {T(1)}, {V(v_l)}, 3, 1")
    a(f"v_lshrrev_b32 {T(2)}, 4, {V(v_l)}")
    a(f"v_mul_u32_u24 {T(1)}, 1280, {T(1)}")
    a(f"v_mul_u32_u24 {T(2)}, 40, {T(2)}")
    a(f"s_mul_i32 {S(s_t0)}, {S(s_j)}, 160")
    a(f"v_add3_u32 {T(1)}, {T(1)}, {T(2)}, {S(s_t0)}")
    for k in range(5):
        a(f"ds_read_b64 {V(v_xp + 2 * k, 2)}, {T(1)} offset:{L_XN + 8 * k}")
    a("s_waitcnt lgkmcnt(0)")
    D1, D2 = v_d, v_d + 4
    for u in range(10):
        sel = s_sel1 if (u & 1) else s_sel0
        a(f"v_perm_b32 {T(2)}, {V(v_xp + (u >> 1))}, {V(v_xp + (u >> 1))}, {S(sel)}")
        a(f"v_perm_b32 {T(3)}, {V(v_xp + 5 + (u >> 1))}, {V(v_xp + 5 + (u >> 1))}, {S(sel)}")
        aprep(v_a, v_t + 2)
        aprep(v_a + 4, v_t + 3)
        a(f"s_waitcnt vmcnt({9 - u + n_after_role })")
        c1 = "0" if u == 0 else V(D1, 4)
        c2 = "0" if u == 0 else V(D2, 4)
        a(f"v_mfma_f32_16x16x32_bf16 {V(D1, 4)}, {V(v_a, 4)}, {V(v_w + 4 * u, 4)}, {c1}")
        a(f"v_mfma_f32_16x16x32_bf16 {V(D2, 4)}, {V(v_a + 4, 4)}, {V(v_w + 4 * u, 4)}, {c2}")
    stamp(6)
    PUB = v_t + 4
    a(f"v_mov_b32 {V(PUB + 1)}, {S(s_non)}")
    a(f"v_mov_b32 {V(PUB + 3)}, {S(s_non)}")
    a(f"s_mul_i32 {S(s_t0)}, {S(s_h)}, 3")
    a(f"s_lshl_b32 {S(s_t1)}, {S(s_h)}, 1")
    a(f"s_add_u32 {S(s_t1)}, {S(s_t1)}, 93")
    a(f"s_cmp_lt_u32 {S(s_w)}, 3")
    a(f"s_cselect_b32 {S(s_t0)}, {S(s_t0)}, {S(s_t1)}")
    a(f"s_add_u32 {S(s_t0)}, {S(s_t0)}, {S(s_w)}")
    a(f"s_lshl_b32 {S(s_t0)}, {S(s_t0)}, 13")
    a(f"s_add_u32 {S(s_t0)}, {S(s_t0)}, {WS_H0}")
    a(f"s_lshl_b32 {S(s_t1)}, {S(s_j)}, 10")
    a(f"s_add_u32 {S(s_t1)}, {S(s_t1)}, {S(s_t0)}")
    a(f"v_add_f32_dpp {V(PUB)}, {V(D2)}, {V(D1)} row_ror:8 row_mask:0xf bank_mask:0x3")
    a(f"v_add_f32_dpp {V(PUB + 2)}, {V(D2 + 1)}, {V(D1 + 1)} row_ror:8 row_mask:0xf bank_mask:0x3")
    a(f"v_add_f32_dpp {V(PUB)}, {V(D1 + 2)}, {V(D2 + 2)} row_ror:8 row_mask:0xf bank_mask:0xc")
    a(f"v_add_f32_dpp {V(PUB + 2)}, {V(D1 + 3)}, {V(D2 + 3)} row_ror:8 row_mask:0xf bank_mask:0xc")
    a(f"buffer_store_dwordx4 {V(PUB, 4)}, {V(v_l16)}, {S(R_WS, 4)}, {S(s_t1)} offen sc1")
    stamp(7)
    a(f"s_cmp_lt_u32 {S(s_w)}, 3")
    if "gq" in skip:
        a("s_branch L_pre")
    a("s_cbranch_scc0 L_pre")
    a("s_setprio 3")
    G = v_w
    a(f"v_lshrrev_b32 {T(1)}, 5, {V(v_l)}")
    a(f"v_and_b32 {T(2)}, 31, {V(v_l)}")
    a(f"v_lshlrev_b32 {T(1)}, 10, {T(1)}")
    a(f"v_lshl_add_u32 {T(1)}, {T(2)}, 4, {T(1)}")
    a(f"s_lshl_b32 {S(s_t1)}, {S(s_b)}, 9")
    a(f"s_add_u32 {S(s_t0)}, {S(s_t0)}, {S(s_t1)}")
    a(f"s_add_u32 {S(s_t1)}, {S(s_t0)}, 4096")
    a.label("L_gq")
    for u in range(4):
        so = s_t0 if u < 2 else s_t1
        off = " offset:2048" if (u & 1) else ""
        a(f"buffer_load_dwordx4 {V(G + 4 * u, 4)}, {T(1)}, {S(R_WS, 4)}, {S(so)} offen{off} sc1")
    a("s_waitcnt vmcnt(0)")
    for u in range(4):
        a(f"v_cmpx_eq_u32 vcc, {S(s_non)}, {V(G + 4 * u + 1)}")
        a(f"v_cmpx_eq_u32 vcc, {S(s_non)}, {V(G + 4 * u + 3)}")
    a("s_cmp_eq_u64 exec, -1")
    a("s_mov_b64 exec, -1")
    spin_check("L_gq", "L_gq_ok")
    stamp(8)
    for k in (0, 2):
        a(f"v_add_f32 {V(G + k)}, {V(G + k)}, {V(G + 4 + k)}")
        a(f"v_add_f32 {V(G + 8 + k)}, {V(G + 8 + k)}, {V(G + 12 + k)}")
    for k in (0, 2):
        a(f"v_add_f32 {V(G + k)}, {V(G + k)}, {V(G + 8 + k)}")
    for k in (0, 2):
        a(f"v_mov_b32 {V(G + k + 1)}, {V(G + k)}")
    for k in (0, 2):
        a(f"v_permlane32_swap_b32 {V(G + k + 1)}, {V(G + k)}")
    for k in (0, 2):
        a(f"v_add_f32 {V(G + k)}, {V(G + k)}, {V(G + k + 1)}")
    a(f"v_cvt_pk_bf16_f32 {V(G)}, {V(G)}, {V(G + 2)}")
    a(f"v_and_b32 {T(1)}, 7, {V(v_l)}")
    a(f"v_lshlrev_b32 {T(1)}, 4, {T(1)}")
    a(f"v_bfe_u32 {T(2)}, {V(v_l)}, 4, 1")
    a(f"v_lshl_add_u32 {T(1)}, {T(2)}, 3, {T(1)}")
    a(f"v_bfe_u32 {T(2)}, {V(v_l)}, 3, 1")
    a(f"v_lshl_add_u32 {T(1)}, {T(2)}, 2, {T(1)}")
    a(f"s_lshl_b32 {S(s_t0)}, {S(s_w)}, 7")
    a(f"v_add_u32 {T(1)}, {S(s_t0)}, {T(1)}")
    a(f"ds_write_b32 {T(1)}, {V(G)} offset:{L_Q}")
    a.label("L_pre")
    a("s_setprio 0")
    if "late" in skip:
        a("s_waitcnt lgkmcnt(0)")
        a("s_barrier")

    def ring_loads():
        for g in range(D):
            kv_load(q, g, g % D)
    if not c["pwfirst"]:
        ring_loads()
    a(f"s_lshl_b32 {S(s_t0)}, {S(s_h)}, 1")
    a(f"s_add_u32 {S(s_t0)}, {S(s_t0)}, 96")
    a(f"s_lshl_b32 {S(s_t0)}, {S(s_t0)}, 3")
    a(f"s_add_u32 {S(s_t0)}, {S(s_t0)}, {S(s_w)}")
    a(f"s_lshl_b32 {S(s_t0)}, {S(s_t0)}, 10")
    a(f"s_add_u32 {S(s_g0)}, {S(s_t0)}, {WS_H0}")
    a(f"s_add_u32 {S(s_g0 + 1)}, {S(s_g0)}, 8192")
    a(f"s_mul_i32 {S(s_t0)}, {S(s_h)}, 192")
    a(f"s_mul_i32 {S(s_t1)}, {S(s_w)}, 24")
    a(f"s_add_u32 {S(s_t0)}, {S(s_t0)}, {S(s_t1)}")
    a(f"s_mul_i32 {S(s_t0)}, {S(s_t0)}, 1280")
    a(f"s_mul_i32 {S(s_t2)}, {S(s_j)}, 160")
    a(f"s_add_u32 {S(s_t0)}, {S(s_t0)}, {S(s_t2)}")
    srd(R_WO, p_wo, s_t0, 24 * 1280)
    a(f"s_mul_i32 {S(s_t0)}, {S(s_h)}, 48")
    a(f"s_lshl_b32 {S(s_t1)}, {S(s_w)}, 3")
    a(f"s_add_u32 {S(s_t0)}, {S(s_t0)}, {S(s_t1)}")
    a(f"s_mul_i32 {S(s_t0)}, {S(s_t0)}, 1280")
    a(f"s_add_u32 {S(s_t0)}, {S(s_t0)}, {S(s_t2)}")
    srd(R_DN, p_down, s_t0, 8 * 1280)
    a(f"v_lshrrev_b32 {T(2)}, 4, {V(v_l)}")
    a(f"v_and_b32 {T(3)}, 15, {V(v_l)}")
    a(f"v_lshlrev_b32 {T(3)}, 4, {T(3)}")
    a(f"v_mul_u32_u24 {T(4)}, 7680, {T(2)}")
    a(f"v_add_u32 {T(4)}, {T(4)}, {T(3)}")
    a(f"v_mul_u32_u24 {T(5)}, 2560, {T(2)}")
    a(f"v_add_u32 {T(5)}, {T(5)}, {T(3)}")
    a(f"s_mov_b32 {S(s_t0)}, 5120")
    a(f"s_mov_b32 {S(s_msk)}, 0x03ff03ff")
    a(f"s_mov_b32 {S(s_msk + 1)}, 0x03ff03ff")
    a(f"s_mov_b64 exec, {S(s_msk, 2)}")
    for u in range(6):
        so = "0" if u < 4 else S(s_t0)
        off = 1280 * (u % 4)
        o = f" offset:{off}" if off else ""
        if "pw" not in skip:
            a(f"buffer_load_dwordx4 {V(v_pw + 4 * u, 4)}, {T(4)}, {S(R_WO, 4)}, {so} offen{o}{wpol}")
    if "pw" not in skip:
        q.issue("pw", 6)
    a(f"s_cmp_lt_u32 {S(s_w)}, 6")
    a("s_cbranch_scc0 L_nodn")
    for u in range(2 if "pw" not in skip else 0):
        o = " offset:1280" if u else ""
        a(f"buffer_load_dwordx4 {V(v_pw + 24 + 4 * u, 4)}, {T(5)}, {S(R_DN, 4)}, 0 offen{o}{wpol}")
    a.label("L_nodn")
    a("s_mov_b64 exec, -1")
    srd(R_X, p_x, None, 2560)
    a(f"s_and_b32 {S(s_t0)}, {S(s_h)}, 1")
    a(f"s_mul_i32 {S(s_t0)}, {S(s_t0)}, 640")
    a(f"s_bfe_u32 {S(s_t1)}, {S(s_h)}, 0x30001")
    a(f"s_mul_i32 {S(s_t1)}, {S(s_t1)}, 10")
    a(f"s_add_u32 {S(s_t0)}, {S(s_t0)}, {S(s_t1)}")
    a(f"s_mul_i32 {S(s_t1)}, {S(s_j)}, 80")
    a(f"s_add_u32 {S(s_t0)}, {S(s_t0)}, {S(s_t1)}")
    a(f"s_lshl_b32 {S(s_u0)}, {S(s_t0)}, 1")
    a(f"v_and_b32 {T(1)}, 7, {V(v_l)}")
    a(f"v_min_u32 {T(1)}, 4, {T(1)}")
    a(f"v_lshlrev_b32 {T(1)}, 2, {T(1)}")
    a(f"buffer_load_dword {V(v_xr)}, {T(1)}, {S(R_X, 4)}, {S(s_u0)} offen")
    q.issue("xr", 1)
    if c["pwfirst"]:
        ring_loads()
    a("s_waitcnt lgkmcnt(0)")
    stamp(25)
    a("s_barrier")
    stamp(9)
    a(f"v_and_b32 {T(1)}, 7, {V(v_l)}")
    a(f"v_lshlrev_b32 {T(1)}, 4, {T(1)}")
    for t in range(3):
        a(f"ds_read_b128 {V(v_q + 4 * t, 4)}, {T(1)} offset:{L_Q + 128 * t}")
    a(f"v_mov_b32 {V(v_mx)}, 0xff7fffff")
    if c["prio"] == "step":
        a("s_setprio 3")
    a("s_waitcnt lgkmcnt(0)")
    for i in range(16):
        slot = i % D
        n = q.wait(f"g{i}")
        a(f"s_waitcnt vmcnt({n})")
        a0, a1, a2 = v_t, v_t + 1, v_t + 2
        for t, acc in enumerate((a0, a1, a2)):
            for k in range(4):
                src = "0" if k == 0 else V(acc)
                a(f"v_dot2_f32_bf16 {V(acc)}, {ring(slot, 4 * t + k)}, {V(v_q + 4 * t + k)}, {src}")
        kv_load(q, i + D, slot)
        if i == c["ffstep"]:
            a(f"buffer_load_dwordx4 {V(v_ff, 4)}, {V(v_l16)}, {S(R_WS, 4)}, {S(s_g0)} offen sc1")
            a(f"buffer_load_dwordx4 {V(v_ff + 4, 4)}, {V(v_l16)}, {S(R_WS, 4)}, {S(s_g0 + 1)} offen sc1")
            q.issue("ff", 2)
        if c["prio"] == "step" and i == 7:
            a("s_setprio 2")
        a(f"v_add_f32 {V(a0)}, {V(a0)}, {V(a1)}")
        a(f"v_add_f32 {V(a0)}, {V(a0)}, {V(a2)}")
        for m in ("quad_perm:[1,0,3,2]", "quad_perm:[2,3,0,1]", "row_half_mirror"):
            a(f"v_add_f32_dpp {V(a0)}, {V(a0)}, {V(a0)} {m} row_mask:0xf bank_mask:0xf")
        a(f"v_cvt_pk_bf16_f32 {V(a0)}, {V(a0)}, {V(a0)}")
        a(f"v_lshlrev_b32 {V(a0)}, 16, {V(a0)}")
        a(f"v_mul_f32 {V(a0)}, {S(s_scale)}, {V(a0)}")
        a(f"v_cvt_pk_bf16_f32 {V(a0)}, {V(a0)}, {V(a0)}")
        a(f"v_and_b32 {V(v_s + i)}, {S(s_hi)}, {V(a0)}")
        a(f"v_max_f32 {V(v_mx)}, {V(v_mx)}, {V(v_s + i)}")
        if i == 0:
            stamp(10)
        if i == 7:
            stamp(11)
    stamp(12)
    if c["prio"] == "step":
        a("s_setprio 1")
    allsum(v_mx, v_t, "max")
    a(f"v_mul_f32 {T(4)}, {S(s_l2e)}, {V(v_mx)}")
    a(f"v_sub_f32 {T(4)}, 0, {T(4)}")
    for i in range(16):
        a(f"v_fma_f32 {V(v_s + i)}, {V(v_s + i)}, {S(s_l2e)}, {T(4)}")
    for i in range(16):
        a(f"v_exp_f32 {V(v_s + i)}, {V(v_s + i)}")
    a(f"v_add_f32 {V(v_ls)}, {V(v_s)}, {V(v_s + 1)}")
    for i in range(2, 16):
        a(f"v_add_f32 {V(v_ls)}, {V(v_ls)}, {V(v_s + i)}")
    for i in range(16):
        a(f"v_cvt_pk_bf16_f32 {V(v_s + i)}, {V(v_s + i)}, {V(v_s + i)}")
    allsum(v_ls, v_t, "add")
    a(f"s_lshl_b32 {S(s_t0)}, {S(s_w)}, 2")
    a(f"v_mov_b32 {T(1)}, {S(s_t0)}")
    a("s_mov_b64 exec, 1")
    a(f"ds_write_b32 {T(1)}, {V(v_mx)} offset:{L_MX}")
    a(f"ds_write_b32 {T(1)}, {V(v_ls)} offset:{L_LS}")
    a("s_mov_b64 exec, -1")
    a(f"v_lshrrev_b32 {T(2)}, 5, {V(v_l)}")
    a(f"s_lshl_b32 {S(s_t0)}, {S(s_w)}, 1")
    a(f"v_add_u32 {T(2)}, {S(s_t0)}, {T(2)}")
    a(f"v_mul_u32_u24 {V(v_pa)}, 768, {T(2)}")
    a(f"v_and_b32 {T(2)}, 7, {V(v_l)}")
    a(f"v_lshl_add_u32 {V(v_pa)}, {T(2)}, 5, {V(v_pa)}")
    a(f"v_bfe_u32 {T(2)}, {V(v_l)}, 4, 1")
    a(f"v_lshl_add_u32 {V(v_pa)}, {T(2)}, 4, {V(v_pa)}")
    stamp(13)
    def ffn_check():
        assert "ff" not in q.q
        a.label("L_ffchk")
        a(f"s_mov_b32 {S(s_msk)}, 0x3f3f3f3f")
        a(f"s_mov_b32 {S(s_msk + 1)}, 0x3f3f3f3f")
        a(f"s_mov_b64 exec, {S(s_msk, 2)}")
        for k in (1, 3, 5, 7):
            a(f"v_cmpx_eq_u32 vcc, {S(s_non)}, {V(v_ff + k)}")
        a(f"s_cmp_eq_u64 exec, {S(s_msk, 2)}")
        a("s_mov_b64 exec, -1")
        a("s_cbranch_scc1 L_ffok")
        a(f"buffer_load_dwordx4 {V(v_ff, 4)}, {V(v_l16)}, {S(R_WS, 4)}, {S(s_g0)} offen sc1")
        a(f"buffer_load_dwordx4 {V(v_ff + 4, 4)}, {V(v_l16)}, {S(R_WS, 4)}, {S(s_g0 + 1)} offen sc1")
        a("s_waitcnt vmcnt(0)")
        a(f"s_sub_u32 {S(s_spin)}, {S(s_spin)}, 1")
        a(f"s_cmp_lg_u32 {S(s_spin)}, 0")
        a("s_cbranch_scc1 L_ffchk")
        a.label("L_ffok")
        a(f"v_lshlrev_b32 {T(1)}, 3, {V(v_l)}")
        a(f"s_lshl_b32 {S(s_t0)}, {S(s_w)}, 10")
        a(f"v_add_u32 {T(1)}, {S(s_t0)}, {T(1)}")
        a(f"v_mov_b32 {V(v_ff + 1)}, {V(v_ff + 2)}")
        a(f"v_mov_b32 {V(v_ff + 5)}, {V(v_ff + 6)}")
        a(f"ds_write_b64 {T(1)}, {V(v_ff, 2)} offset:{L_FP}")
        a(f"ds_write_b64 {T(1)}, {V(v_ff + 4, 2)} offset:{L_FP + 512}")

    for i in range(16):
        g = 16 + i
        slot = g % D
        A = v_a + 4 * (i & 1)
        aprep(A, v_s + i)
        n = q.wait(f"g{g}")
        a(f"s_waitcnt vmcnt({n})")
        for t in range(3):
            cacc = "0" if i == 0 else V(v_acc + 4 * t, 4)
            a(f"v_mfma_f32_16x16x32_bf16 {V(v_acc + 4 * t, 4)}, {V(A, 4)}, {ring(slot, 4 * t, 4)}, {cacc}")
        if g + D < 32:
            kv_load(q, g + D, slot)
        if i == 1:
            ffn_check()
        if i == 7:
            if c["prio"] == "step":
                a("s_setprio 0")
            stamp(14)
    stamp(15)
    a("s_mov_b32 exec_lo, 0x00ff00ff")
    a("s_mov_b32 exec_hi, 0xff00ff00")
    for t in range(3):
        a(f"ds_write_b128 {V(v_pa)}, {V(v_acc + 4 * t, 4)} offset:{L_P + 256 * t}")
    a("s_mov_b64 exec, -1")
    a(f"s_lshl_b32 {S(s_t0)}, {S(s_h)}, 3")
    a(f"s_lshl_b32 {S(s_g0)}, {S(s_t0)}, 11")
    a(f"s_add_u32 {S(s_g0)}, {S(s_g0)}, {WS_H2}")
    a(f"s_lshl_b32 {S(s_t1)}, {S(s_j)}, 11")
    a(f"s_add_u32 {S(s_t1)}, {S(s_t1)}, {S(s_g0)}")
    for k in range(1, 4):
        a(f"s_add_u32 {S(s_g0 + k)}, {S(s_g0)}, {4096 * k}")
    a("s_waitcnt lgkmcnt(0)")
    a("s_barrier")
    stamp(16)
    G = v_r
    PUB = v_t + 4
    a(f"s_cmp_lt_u32 {S(s_w)}, 3")
    a("s_cbranch_scc0 L_notg2")
    FW = G + 32
    a(f"v_mov_b32 {T(1)}, 0")
    a(f"ds_read_b128 {V(FW, 4)}, {T(1)} offset:{L_MX}")
    a(f"ds_read_b128 {V(FW + 4, 4)}, {T(1)} offset:{L_MX + 16}")
    a(f"s_cmp_eq_u32 {S(s_w)}, 2")
    a("s_cbranch_scc1 L_pubml")

    def wave_factors():
        a(f"v_max3_f32 {T(4)}, {V(FW)}, {V(FW + 1)}, {V(FW + 2)}")
        a(f"v_max3_f32 {T(5)}, {V(FW + 3)}, {V(FW + 4)}, {V(FW + 5)}")
        a(f"v_max3_f32 {T(4)}, {T(4)}, {V(FW + 6)}, {V(FW + 7)}")
        a(f"v_max_f32 {V(v_mx)}, {T(4)}, {T(5)}")
        for k in range(8):
            a(f"v_sub_f32 {V(FW + k)}, {V(FW + k)}, {V(v_mx)}")
        for k in range(8):
            a(f"v_mul_f32 {V(FW + k)}, {S(s_l2e)}, {V(FW + k)}")
        for k in range(8):
            a(f"v_exp_f32 {V(FW + k)}, {V(FW + k)}")
    a(f"v_lshlrev_b32 {T(1)}, 3, v0")
    for k in range(16):
        a(f"ds_read_b64 {V(G + 2 * k, 2)}, {T(1)} offset:{L_P + 768 * k}")
    a(f"s_waitcnt lgkmcnt(15)")
    wave_factors()
    a(f"v_lshlrev_b32 {T(2)}, 4, v0")
    a("s_waitcnt lgkmcnt(0)")
    for k in range(8):
        a(f"v_pk_add_f32 {V(G + 4 * k, 2)}, {V(G + 4 * k, 2)}, {V(G + 4 * k + 2, 2)}")
    for k in range(8):
        sel = k & 1
        fw = V(FW + (k & ~1), 2)
        mods = f"op_sel:[0,{sel}] op_sel_hi:[1,{sel}]"
        if k < 2:
            a(f"v_pk_mul_f32 {V(G + 4 * k, 2)}, {V(G + 4 * k, 2)}, {fw} {mods}")
        else:
            mods3 = f"op_sel:[0,{sel},0] op_sel_hi:[1,{sel},1]"
            a(f"v_pk_fma_f32 {V(G + 4 * (k & 1), 2)}, {V(G + 4 * k, 2)}, {fw}, {V(G + 4 * (k & 1), 2)} {mods3}")
    a(f"v_add_f32 {V(PUB)}, {V(G)}, {V(G + 4)}")
    a(f"v_add_f32 {V(PUB + 2)}, {V(G + 1)}, {V(G + 5)}")
    a(f"v_mov_b32 {V(PUB + 1)}, {S(s_non)}")
    a(f"v_mov_b32 {V(PUB + 3)}, {S(s_non)}")
    a(f"v_cmp_gt_u32 vcc, 96, v0")
    a(f"s_and_b64 exec, exec, vcc")
    a(f"buffer_store_dwordx4 {V(PUB, 4)}, {T(2)}, {S(R_WS, 4)}, {S(s_t1)} offen sc1")
    a("s_mov_b64 exec, -1")
    a("s_branch L_g2")
    a.label("L_pubml")
    a(f"v_mov_b32 {T(1)}, 0")
    a(f"ds_read_b128 {V(G, 4)}, {T(1)} offset:{L_LS}")
    a(f"ds_read_b128 {V(G + 4, 4)}, {T(1)} offset:{L_LS + 16}")
    a(f"s_waitcnt lgkmcnt(2)")
    wave_factors()
    a(f"v_mov_b32 {V(PUB + 1)}, {S(s_non)}")
    a(f"v_mov_b32 {V(PUB + 3)}, {S(s_non)}")
    a(f"v_mov_b32 {T(2)}, 1536")
    a("s_waitcnt lgkmcnt(0)")
    for k in range(4):
        a(f"v_pk_mul_f32 {V(G + 2 * k, 2)}, {V(G + 2 * k, 2)}, {V(FW + 2 * k, 2)}")
    a(f"v_pk_add_f32 {V(G, 2)}, {V(G, 2)}, {V(G + 2, 2)}")
    a(f"v_pk_add_f32 {V(G + 4, 2)}, {V(G + 4, 2)}, {V(G + 6, 2)}")
    a(f"v_pk_add_f32 {V(G, 2)}, {V(G, 2)}, {V(G + 4, 2)}")
    a(f"v_mov_b32 {V(PUB)}, {V(v_mx)}")
    a(f"v_add_f32 {V(PUB + 2)}, {V(G)}, {V(G + 1)}")
    a("s_mov_b64 exec, 1")
    a(f"buffer_store_dwordx4 {V(PUB, 4)}, {T(2)}, {S(R_WS, 4)}, {S(s_t1)} offen sc1")
    a("s_mov_b64 exec, -1")
    a.label("L_g2")
    stamp(17)
    a(f"v_cmp_le_u32 vcc, 96, v0")
    a(f"v_cndmask_b32 {T(1)}, 0, 1, vcc")
    a(f"v_mul_u32_u24 {T(2)}, 96, {T(1)}")
    a(f"v_sub_u32 {T(2)}, v0, {T(2)}")
    a(f"v_lshlrev_b32 {T(3)}, 11, {T(1)}")
    a(f"v_lshl_add_u32 {T(8)}, {T(2)}, 4, {T(3)}")
    a(f"v_add_u32 {T(9)}, 1536, {T(3)}")
    a(f"v_mul_u32_u24 {T(10)}, 480, {T(1)}")
    a(f"v_lshl_add_u32 {T(10)}, {T(2)}, 2, {T(10)}")
    a.label("L_g2l")
    for k in range(4):
        a(f"buffer_load_dwordx4 {V(G + 16 + 4 * k, 4)}, {T(9)}, {S(R_WS, 4)}, {S(s_g0 + k)} offen sc1")
        a(f"buffer_load_dwordx4 {V(G + 4 * k, 4)}, {T(8)}, {S(R_WS, 4)}, {S(s_g0 + k)} offen sc1")
    a("s_waitcnt vmcnt(0)")
    for k in range(8):
        a(f"v_cmpx_eq_u32 vcc, {S(s_non)}, {V(G + 4 * k + 1)}")
        a(f"v_cmpx_eq_u32 vcc, {S(s_non)}, {V(G + 4 * k + 3)}")
    a("s_cmp_eq_u64 exec, -1")
    a("s_mov_b64 exec, -1")
    spin_check("L_g2l", "L_g2ok")
    stamp(18)
    M = lambda k: V(G + 16 + 4 * k)
    Ls = lambda k: V(G + 16 + 4 * k + 2)
    a(f"v_max3_f32 {T(1)}, {M(0)}, {M(1)}, {M(2)}")
    a(f"v_max_f32 {T(1)}, {T(1)}, {M(3)}")
    for k in range(4):
        a(f"v_sub_f32 {M(k)}, {M(k)}, {T(1)}")
    for k in range(4):
        a(f"v_mul_f32 {M(k)}, {S(s_l2e)}, {M(k)}")
    for k in range(4):
        a(f"v_exp_f32 {M(k)}, {M(k)}")
    a(f"v_mul_f32 {T(1)}, {M(0)}, {Ls(0)}")
    a(f"v_mul_f32 {T(2)}, {M(0)}, {V(G)}")
    a(f"v_mul_f32 {T(3)}, {M(0)}, {V(G + 2)}")
    for k in range(1, 4):
        a(f"v_fmac_f32 {T(1)}, {M(k)}, {Ls(k)}")
        a(f"v_fmac_f32 {T(2)}, {M(k)}, {V(G + 4 * k)}")
        a(f"v_fmac_f32 {T(3)}, {M(k)}, {V(G + 4 * k + 2)}")
    a(f"v_rcp_f32 {T(1)}, {T(1)}")
    a(f"v_mul_f32 {T(2)}, {T(2)}, {T(1)}")
    a(f"v_mul_f32 {T(3)}, {T(3)}, {T(1)}")
    a(f"v_cvt_pk_bf16_f32 {T(2)}, {T(2)}, {T(3)}")
    a(f"ds_write_b32 {T(10)}, {T(2)} offset:{L_VEC}")
    a("s_branch L_b4")
    a.label("L_notg2")
    a(f"s_cmp_eq_u32 {S(s_w)}, 3")
    a("s_cbranch_scc0 L_b4")
    a(f"v_lshlrev_b32 {T(1)}, 3, {V(v_l)}")
    for k in range(8):
        a(f"ds_read_b64 {V(G + 2 * k, 2)}, {T(1)} offset:{L_FP + 1024 * k}")
        a(f"ds_read_b64 {V(G + 16 + 2 * k, 2)}, {T(1)} offset:{L_FP + 1024 * k + 512}")
    a("s_waitcnt lgkmcnt(0)")
    for base in (G, G + 16):
        for st in (4, 2, 1):
            for k in range(st):
                a(f"v_pk_add_f32 {V(base + 2 * k, 2)}, {V(base + 2 * k, 2)}, {V(base + 2 * (k + st), 2)}")
    a(f"v_cvt_pk_bf16_f32 {T(2)}, {V(G)}, {V(G + 1)}")
    a(f"v_cvt_pk_bf16_f32 {T(3)}, {V(G + 16)}, {V(G + 17)}")
    g0, g1, u0, u1 = G, G + 1, G + 2, G + 3
    a(f"v_lshlrev_b32 {V(g0)}, 16, {T(2)}")
    a(f"v_and_b32 {V(g1)}, {S(s_hi)}, {T(2)}")
    a(f"v_lshlrev_b32 {V(u0)}, 16, {T(3)}")
    a(f"v_and_b32 {V(u1)}, {S(s_hi)}, {T(3)}")
    kz = -2.0 * 0.7978845608028654 * 1.4426950408889634
    a(f"v_mov_b32 {T(4)}, {f32(0.044715)}")
    a(f"v_mov_b32 {T(5)}, {f32(kz)}")
    for gg, tt in ((g0, 6), (g1, 7)):
        a(f"v_mul_f32 {T(tt)}, {V(gg)}, {V(gg)}")
        a(f"v_mul_f32 {T(tt)}, {T(tt)}, {V(gg)}")
        a(f"v_fma_f32 {T(tt)}, {T(tt)}, {T(4)}, {V(gg)}")
        a(f"v_mul_f32 {T(tt)}, {T(tt)}, {T(5)}")
        a(f"v_exp_f32 {T(tt)}, {T(tt)}")
        a(f"v_add_f32 {T(tt)}, 1.0, {T(tt)}")
        a(f"v_rcp_f32 {T(tt)}, {T(tt)}")
        a(f"v_mul_f32 {T(tt)}, {T(tt)}, {V(gg)}")
    a(f"v_cvt_pk_bf16_f32 {T(2)}, {T(6)}, {T(7)}")
    a(f"v_lshlrev_b32 {V(g0)}, 16, {T(2)}")
    a(f"v_and_b32 {V(g1)}, {S(s_hi)}, {T(2)}")
    a(f"v_mul_f32 {V(g0)}, {V(g0)}, {V(u0)}")
    a(f"v_mul_f32 {V(g1)}, {V(g1)}, {V(u1)}")
    a(f"v_cvt_pk_bf16_f32 {T(2)}, {V(g0)}, {V(g1)}")
    a(f"v_lshrrev_b32 {T(3)}, 5, {V(v_l)}")
    a(f"v_mul_u32_u24 {T(3)}, 480, {T(3)}")
    a(f"v_and_b32 {T(4)}, 7, {V(v_l)}")
    a(f"v_lshl_add_u32 {T(3)}, {T(4)}, 4, {T(3)}")
    a(f"v_bfe_u32 {T(4)}, {V(v_l)}, 4, 1")
    a(f"v_lshl_add_u32 {T(3)}, {T(4)}, 3, {T(3)}")
    a(f"v_bfe_u32 {T(4)}, {V(v_l)}, 3, 1")
    a(f"v_lshl_add_u32 {T(3)}, {T(4)}, 2, {T(3)}")
    a("s_mov_b32 exec_lo, 0x3f3f3f3f")
    a("s_mov_b32 exec_hi, 0x3f3f3f3f")
    a(f"ds_write_b32 {T(3)}, {T(2)} offset:{L_VEC + 384}")
    a("s_mov_b64 exec, -1")
    a.label("L_b4")
    a(f"v_bfe_u32 {T(1)}, {V(v_l)}, 3, 1")
    a(f"v_mul_u32_u24 {T(1)}, 480, {T(1)}")
    a(f"v_lshrrev_b32 {T(2)}, 4, {V(v_l)}")
    a(f"v_mul_u32_u24 {T(3)}, 12, {T(2)}")
    a(f"s_mul_i32 {S(s_t0)}, {S(s_w)}, 48")
    a(f"v_add3_u32 {T(3)}, {T(3)}, {T(1)}, {S(s_t0)}")
    a(f"v_lshlrev_b32 {T(2)}, 2, {T(2)}")
    a(f"s_lshl_b32 {S(s_t0)}, {S(s_w)}, 4")
    a(f"v_add3_u32 {T(2)}, {T(2)}, {T(1)}, {S(s_t0)}")
    a("s_waitcnt lgkmcnt(0)")
    a("s_barrier")
    stamp(19)
    a(f"v_add_u32 {T(3)}, {L_VEC}, {T(3)}")
    a(f"v_add_u32 {T(2)}, {L_VEC + 384}, {T(2)}")
    a(f"ds_read2_b32 {V(v_t + 4, 2)}, {T(3)} offset0:0 offset1:1")
    a(f"ds_read_b32 {T(6)}, {T(3)} offset:8")
    a(f"ds_read_b32 {T(7)}, {T(2)}")
    a(f"v_lshrrev_b32 {T(8)}, 5, {V(v_l)}")
    a(f"v_mul_u32_u24 {T(8)}, 320, {T(8)}")
    a(f"v_and_b32 {T(9)}, 15, {V(v_l)}")
    a(f"v_lshl_add_u32 {T(8)}, {T(9)}, 5, {T(8)}")
    a(f"v_bfe_u32 {T(9)}, {V(v_l)}, 4, 1")
    a(f"v_lshl_add_u32 {T(8)}, {T(9)}, 4, {T(8)}")
    a(f"s_mul_i32 {S(s_t0)}, {S(s_w)}, 640")
    a(f"v_add_u32 {T(8)}, {S(s_t0)}, {T(8)}")
    a("s_waitcnt lgkmcnt(0)")
    Y = v_acc
    for u in range(6):
        sel = s_sel1 if (u & 1) else s_sel0
        A = v_a + 4 * (u & 1)
        a(f"v_perm_b32 {T(1)}, {V(v_t + 4 + (u >> 1))}, {V(v_t + 4 + (u >> 1))}, {S(sel)}")
        aprep(A, v_t + 1)
        cacc = "0" if u == 0 else V(Y, 4)
        a(f"v_mfma_f32_16x16x32_bf16 {V(Y, 4)}, {V(A, 4)}, {V(v_pw + 4 * u, 4)}, {cacc}")
    a(f"s_cmp_lt_u32 {S(s_w)}, 6")
    a("s_cbranch_scc0 L_nodn2")
    for u in range(2):
        sel = s_sel1 if (u & 1) else s_sel0
        A = v_a + 4 * (u & 1)
        a(f"v_perm_b32 {T(1)}, {T(7)}, {T(7)}, {S(sel)}")
        aprep(A, v_t + 1)
        a(f"v_mfma_f32_16x16x32_bf16 {V(Y, 4)}, {V(A, 4)}, {V(v_pw + 24 + 4 * u, 4)}, {V(Y, 4)}")
    a.label("L_nodn2")
    a("s_nop 7")
    a("s_mov_b32 exec_lo, 0x03ff03ff")
    a("s_mov_b32 exec_hi, 0x03ff03ff")
    a(f"ds_write_b128 {T(8)}, {V(Y, 4)} offset:{L_Y}")
    a("s_mov_b64 exec, -1")
    a(f"s_lshl_b32 {S(s_t0)}, {S(s_j)}, 5")
    a(f"s_mul_i32 {S(s_g0)}, {S(s_t0)}, 1280")
    a(f"s_add_u32 {S(s_g0)}, {S(s_g0)}, {WS_H3}")
    a(f"s_mul_i32 {S(s_t1)}, {S(s_h)}, 1280")
    a(f"s_add_u32 {S(s_t1)}, {S(s_t1)}, {S(s_g0)}")
    a("s_waitcnt lgkmcnt(0)")
    a("s_barrier")
    stamp(20)
    a(f"s_cmp_lt_u32 {S(s_w)}, 2")
    a("s_cbranch_scc0 L_fin")
    a(f"v_lshlrev_b32 {T(1)}, 3, v0")
    for k in range(8):
        a(f"ds_read_b64 {V(G + 2 * k, 2)}, {T(1)} offset:{L_Y + 640 * k}")
    a(f"v_mov_b32 {V(PUB + 1)}, {S(s_non)}")
    a(f"v_mov_b32 {V(PUB + 3)}, {S(s_non)}")
    a(f"v_lshlrev_b32 {T(2)}, 4, v0")
    a("s_waitcnt lgkmcnt(0)")
    for st in (4, 2):
        for k in range(st):
            a(f"v_pk_add_f32 {V(G + 2 * k, 2)}, {V(G + 2 * k, 2)}, {V(G + 2 * (k + st), 2)}")
    a(f"v_add_f32 {V(PUB)}, {V(G)}, {V(G + 2)}")
    a(f"v_add_f32 {V(PUB + 2)}, {V(G + 1)}, {V(G + 3)}")
    a(f"v_cmp_gt_u32 vcc, 80, v0")
    a(f"s_and_b64 exec, exec, vcc")
    a(f"buffer_store_dwordx4 {V(PUB, 4)}, {T(2)}, {S(R_WS, 4)}, {S(s_t1)} offen sc1")
    stamp(21)
    finish()
    a.label("L_fin")
    a(f"s_cmp_eq_u32 {S(s_w)}, 2")
    a("s_cbranch_scc0 L_end")
    a(f"s_cmp_lt_u32 {S(s_h)}, 16")
    a("s_cbranch_scc0 L_end")
    a(f"s_and_b32 {S(s_t0)}, {S(s_h)}, 1")
    a(f"s_mul_i32 {S(s_t0)}, {S(s_t0)}, 640")
    a(f"s_lshr_b32 {S(s_t1)}, {S(s_h)}, 1")
    a(f"s_mul_i32 {S(s_t1)}, {S(s_t1)}, 80")
    a(f"s_add_u32 {S(s_t0)}, {S(s_t0)}, {S(s_t1)}")
    a(f"s_add_u32 {S(s_g0)}, {S(s_g0)}, {S(s_t0)}")
    for k in range(1, 4):
        a(f"s_add_u32 {S(s_g0 + k)}, {S(s_g0)}, {10240 * k}")
    a(f"v_lshrrev_b32 {T(1)}, 3, {V(v_l)}")
    a(f"v_mul_u32_u24 {T(1)}, 1280, {T(1)}")
    a(f"v_and_b32 {T(2)}, 7, {V(v_l)}")
    a(f"v_lshl_add_u32 {T(1)}, {T(2)}, 4, {T(1)}")
    a(f"s_mov_b32 {S(s_msk)}, 0x1f1f1f1f")
    a(f"s_mov_b32 {S(s_msk + 1)}, 0x1f1f1f1f")
    a.label("L_g3l")
    a(f"s_mov_b64 exec, {S(s_msk, 2)}")
    for k in range(4):
        a(f"buffer_load_dwordx4 {V(G + 4 * k, 4)}, {T(1)}, {S(R_WS, 4)}, {S(s_g0 + k)} offen sc1")
    a("s_waitcnt vmcnt(0)")
    for k in range(4):
        a(f"v_cmpx_eq_u32 vcc, {S(s_non)}, {V(G + 4 * k + 1)}")
        a(f"v_cmpx_eq_u32 vcc, {S(s_non)}, {V(G + 4 * k + 3)}")
    a(f"s_cmp_eq_u64 exec, {S(s_msk, 2)}")
    a("s_mov_b64 exec, -1")
    spin_check("L_g3l", "L_g3ok")
    stamp(22)
    for k in (0, 2):
        a(f"v_add_f32 {V(G + k)}, {V(G + k)}, {V(G + 4 + k)}")
        a(f"v_add_f32 {V(G + 8 + k)}, {V(G + 8 + k)}, {V(G + 12 + k)}")
    for k in (0, 2):
        a(f"v_add_f32 {V(G + k)}, {V(G + k)}, {V(G + 8 + k)}")
    allsum(G, v_t + 3, "add")
    allsum(G + 2, v_t + 4, "add")
    a(f"v_lshlrev_b32 {T(3)}, 16, {V(v_xr)}")
    a(f"v_and_b32 {T(4)}, {S(s_hi)}, {V(v_xr)}")
    a(f"v_add_f32 {T(3)}, {T(3)}, {V(G)}")
    a(f"v_add_f32 {T(4)}, {T(4)}, {V(G + 2)}")
    a(f"v_cvt_pk_bf16_f32 {T(3)}, {T(3)}, {T(4)}")
    srd(R_OUT, p_out, None, 2560)
    a(f"v_lshlrev_b32 {T(2)}, 2, {T(2)}")
    a("s_mov_b64 exec, 0x1f")
    a(f"buffer_store_dword {T(3)}, {T(2)}, {S(R_OUT, 4)}, {S(s_u0)} offen")
    a("s_cmp_eq_u32 s2, 0")
    a("s_cbranch_scc0 L_fin2")
    a("s_mov_b64 exec, 1")
    a(f"v_mov_b32 {T(5)}, {S(s_non)}")
    a(f"v_mov_b32 {T(6)}, 0")
    a(f"buffer_store_dword {T(5)}, {T(6)}, {S(R_WS, 4)}, 0 offen sc1")
    if c["pad"]:
        a.label("L_pad")
        a(f"s_memrealtime {S(98, 2)}")
        a("s_waitcnt lgkmcnt(0)")
        a(f"s_sub_u32 {S(98)}, {S(98)}, {S(96)}")
        a(f"s_cmp_lt_u32 {S(98)}, {c['pad']}")
        a("s_cbranch_scc1 L_pad")
    a.label("L_fin2")
    a("s_mov_b64 exec, -1")
    stamp(23)
    a.label("L_end")
    if c["stamps"]:
        a("s_mov_b64 exec, -1")
        stamp(24)
        a(f"v_lshlrev_b32 {T(1)}, 2, {V(v_l)}")
        a("s_mov_b32 exec_hi, 0")
        a(f"buffer_store_dword {V(v_st)}, {T(1)}, {S(R_WS, 4)}, {S(s_sto)} offen")
        if c["dbg"]:
            a(f"s_cmp_eq_u32 {S(s_w)}, 2")
            a("s_cbranch_scc1 L_dbg")
            a(f"s_cmp_eq_u32 {S(s_w)}, 7")
            a("s_cbranch_scc0 L_exit")
            a.label("L_dbg")
            a("s_mov_b64 exec, -1")
            a(f"v_mov_b32 {T(2)}, 0")
            sel = [(0, 1), (0, 0), (5, 0), (7, 0), (8, 1), (8, 0), (9, 0), (12, 0), (16, 1), (16, 0), (18, 0), (21, 0), (24, 0), (9, 1), (3, 0), (10, 0)]
            for i, (k, mn) in enumerate(sel):
                a(f"v_readlane_b32 {S(s_t0)}, {V(v_st)}, {k}")
                if mn:
                    a(f"s_not_b32 {S(s_t1)}, {S(s_t0)}")
                    a(f"s_cmp_eq_u32 {S(s_t0)}, 0")
                    a(f"s_cselect_b32 {S(s_t0)}, 0, {S(s_t1)}")
                a(f"v_writelane_b32 {T(2)}, {S(s_t0)}, {i}")
            srd(R_OUT, p_dbg, None, 256)
            a("s_mov_b64 exec, 0xffff")
            a(f"buffer_atomic_umax {T(2)}, {T(1)}, {S(R_OUT, 4)}, 0 offen sc1")
    a.label("L_exit")
    a("s_endpgm")

    body = a.finish()
    for p in a.problems:
        print("HAZARD-PROBLEM:", p, file=sys.stderr)
    hdr = open("parallel_sum__mha_block_cached__geglu_ffn__decode.s.ref").read().split("\n")
    top = [l for l in hdr if l.startswith(";") and "@launch" not in l and not l.startswith("; Override") and not l.startswith("; grid=")]
    lead = []
    for l in hdr:
        if not l.startswith(";"):
            break
        if "@launch" in l:
            continue
        lead.append(l)
    out = lead + [f"; @launch grid=(256,1,1) block=(512,1,1) lds={LDS_BYTES}"]
    out += ['.amdgcn_target "amdgcn-amd-amdhsa--gfx950"', ".text", f".globl {NAME}", ".p2align 8", f".type {NAME},@function"]
    out += [(l if l.endswith(":") else "    " + l) for l in body]
    out += ['.section .rodata,"a"', ".p2align 6", f".amdhsa_kernel {NAME}",
            f"  .amdhsa_next_free_vgpr {NV}", "  .amdhsa_next_free_sgpr 102", f"  .amdhsa_accum_offset {NV}",
            "  .amdhsa_group_segment_fixed_size 0", "  .amdhsa_kernarg_size 96", "  .amdhsa_user_sgpr_count 2",
            "  .amdhsa_user_sgpr_kernarg_segment_ptr 1", "  .amdhsa_system_sgpr_workgroup_id_x 1", ".end_amdhsa_kernel", ""]
    return "\n".join(out), a


if __name__ == "__main__":
    cfg = {}
    outp = "parallel_sum__mha_block_cached__geglu_ffn__decode.s"
    for arg in sys.argv[1:]:
        k, v = arg.split("=", 1)
        if k == "out":
            outp = v
        else:
            try:
                cfg[k] = int(v)
            except ValueError:
                cfg[k] = v
    txt, a = gen(cfg)
    open(outp, "w").write(txt)
    print(f"wrote {outp}: {len(txt.splitlines())} lines, {a.nfix} nops inserted")
```
